```python
import torch

def _softmax(x, axis=-1):
    return torch.softmax(x, dim=axis)
def _gelu(x):
    return torch.nn.functional.gelu(x, approximate="tanh")
def _silu(x):
    return torch.nn.functional.silu(x)
def _sigmoid(x):
    return torch.sigmoid(x)
def _layernorm(x, axis=-1, eps=1e-5):
    m = x.mean(dim=axis, keepdim=True)
    v = x.var(dim=axis, keepdim=True, unbiased=False)
    return (x - m) / torch.sqrt(v + eps)
def _scatter_add(tgt, idx, src, axis=0):
    return tgt.clone().index_add_(axis, idx, src)
def _segment_sum(src, seg, n):
    out = torch.zeros((n,) + src.shape[1:], dtype=src.dtype)
    return out.index_add_(0, seg, src)
def _pad(x, pw):
    flat = tuple(v for pair in reversed(pw) for v in pair)
    return torch.nn.functional.pad(x, flat)

kernel_name = 'gated_mix__softmax_full_mha__geglu_ffn__prompt'

def setup_inputs():

    _w = (lambda a: (lambda t: t.to(torch.bfloat16) if t.is_floating_point() else t)(torch.as_tensor(a)))
    def _A_setup():
        B, S, D = 1, 2048, 576
        return {
            "x": _w((lambda *s: torch.randn(*s, dtype=torch.bfloat16) * 0.05)(B, S, D)),
            "wqkv": _w((lambda *s: torch.randn(*s, dtype=torch.bfloat16) * 0.8)(D, 3 * D)),
            "wo": _w((lambda *s: torch.randn(*s, dtype=torch.bfloat16) * 0.05)(D, D)),
        }
    _A_in = _A_setup()

    def _B_setup():
        B, S, D, F = 1, 2048, 576, 4608
        return {
            "x": _w((lambda *s: torch.randn(*s, dtype=torch.bfloat16) * 0.05)(B, S, D)),
            "w_gate": _w((lambda *s: torch.randn(*s, dtype=torch.bfloat16) * 0.1)(D, F)),
            "w_up": _w((lambda *s: torch.randn(*s, dtype=torch.bfloat16) * 0.1)(D, F)),
            "w_down": _w((lambda *s: torch.randn(*s, dtype=torch.bfloat16) * 0.1)(F, D)),
        }
    _B_in = _B_setup()

    return {
        "A_x": _A_in["x"],
        "A_wqkv": _A_in["wqkv"],
        "A_wo": _A_in["wo"],
        "B_x": _B_in["x"],
        "B_w_gate": _B_in["w_gate"],
        "B_w_up": _B_in["w_up"],
        "B_w_down": _B_in["w_down"],
        "gate_w": _w((lambda *s: torch.randn(*s, dtype=torch.bfloat16) * 0.05)(576) * 16.0),
    }

def reference(A_x, A_wqkv, A_wo, B_x, B_w_gate, B_w_up, B_w_down, gate_w):
    def _A_ref(x, wqkv, wo):
        B, S, D = x.shape
        H = 32; Dh = D // H
        qkv = (lambda x, *d: x.permute(*d))((x @ wqkv).reshape(B, S, 3, H, Dh), 2, 0, 3, 1, 4)
        q, k, v = qkv[0], qkv[1], qkv[2]
        scale = Dh ** -0.5
        scores = torch.einsum("bhqd,bhkd->bhqk", q, k) * scale
        p = _softmax(scores, axis=-1)
        o = torch.einsum("bhqk,bhkd->bhqd", p, v)
        return (lambda x, *d: x.permute(*d))(o, 0, 2, 1, 3).reshape(B, S, D) @ wo

    def _B_ref(x, w_gate, w_up, w_down):
        return (_gelu(x @ w_gate) * (x @ w_up)) @ w_down

    x = A_x
    g = _sigmoid((x * gate_w).sum(-1, keepdims=True))
    a = _A_ref(x, A_wqkv, A_wo)
    b = _B_ref(x, B_w_gate, B_w_up, B_w_down)
    return g * a + (1 - g) * b
```

```python
import re

REG_RE = re.compile(r'(?<![\w.])([vsa])(?:(\d+)|\[(\d+):(\d+)\])(?![\w])')
TRANS = ("v_exp_f32", "v_log_f32", "v_rcp_f32", "v_rsq_f32", "v_sqrt_f32", "v_sin_f32", "v_cos_f32",
         "v_exp_f16", "v_rcp_f16", "v_rcp_iflag_f32")

def regs_of(op):
    out = set()
    op = op.strip()
    for m in REG_RE.finditer(op):
        k = m.group(1)
        if m.group(2) is not None:
            out.add(f"{k}{int(m.group(2))}")
        else:
            for i in range(int(m.group(3)), int(m.group(4)) + 1):
                out.add(f"{k}{i}")
    if re.search(r'\bvcc(_lo|_hi)?\b', op): out.add("vcc")
    if re.search(r'\bexec(_lo|_hi)?\b', op): out.add("exec")
    if re.search(r'\bm0\b', op): out.add("m0")
    return out

def split_ops(s):
    ops = []; depth = 0; cur = ""
    for ch in s:
        if ch == '[': depth += 1
        if ch == ']': depth -= 1
        if ch == ',' and depth == 0:
            ops.append(cur.strip()); cur = ""
        else:
            cur += ch
    if cur.strip(): ops.append(cur.strip())
    return ops

class Ins:
    __slots__ = ("text", "op", "kind", "wr", "rd", "srcC", "srcAB", "passes", "label", "target", "states", "wide_store", "lds_dma", "comment")
    def __init__(self, text):
        self.text = text
        self.label = None; self.target = None
        self.wr = set(); self.rd = set(); self.srcC = set(); self.srcAB = set()
        self.passes = 0; self.states = 1; self.wide_store = set(); self.lds_dma = False
        t = text.split(";")[0].strip()
        if t.endswith(":"):
            self.kind = "label"; self.label = t[:-1]; self.op = ""; self.states = 0; return
        if t.startswith(".") or not t:
            self.kind = "dir"; self.op = ""; self.states = 0; return
        parts = t.split(None, 1)
        op = parts[0]; self.op = op
        rest = parts[1] if len(parts) > 1 else ""
        ops = split_ops(rest)
        R = [regs_of(o) for o in ops]
        if op.startswith("v_mfma"):
            self.kind = "mfma"
            self.wr = R[0]; self.srcAB = R[1] | R[2]; self.srcC = R[3]; self.rd = self.srcAB | self.srcC
            if "32x32x16" in op or "32x32x8" in op: self.passes = 8
            elif "16x16x32" in op or "16x16x16" in op: self.passes = 4
            else: raise ValueError("unknown mfma " + op)
        elif op.startswith("v_"):
            self.kind = "trans" if op.replace("_e32", "").replace("_e64", "") in TRANS else "valu"
            if op.startswith("v_cmp"):
                self.wr = R[0]; self.rd = set().union(*R[1:])
                if op.startswith("v_cmpx"): self.wr = self.wr | {"exec"}
            elif op.startswith("v_permlane") and "swap" in op:
                self.wr = R[0] | R[1]; self.rd = R[0] | R[1]
            elif op.startswith(("v_add_co", "v_sub_co", "v_addc_co", "v_subb_co", "v_subrev_co")):
                self.wr = R[0] | R[1]; self.rd = set().union(*R[2:])
            elif op == "v_nop":
                pass
            else:
                self.wr = R[0]; self.rd = set().union(*R[1:]) if len(R) > 1 else set()
                if op.startswith(("v_fmac", "v_dot2c", "v_pk_fmac", "v_writelane")) or "UNUSED_PRESERVE" in rest: self.rd = self.rd | R[0]
        elif op.startswith("ds_"):
            self.kind = "ds"
            if op.startswith(("ds_read", "ds_bpermute", "ds_permute", "ds_swizzle")):
                self.wr = R[0]; self.rd = set().union(*R[1:])
            else:
                self.rd = set().union(*R)
        elif op.startswith(("buffer_", "global_")):
            self.kind = "vmem"
            islds = bool(re.search(r'\blds\b', rest)) or "_lds_" in op
            if "load" in op and not islds:
                self.wr = R[0]; self.rd = set().union(*R[1:])
            else:
                self.rd = set().union(*R)
                if islds:
                    self.lds_dma = True; self.rd = self.rd | {"m0"}
                if "store" in op and ("x4" in op or "x3" in op):
                    self.wide_store = R[0] if op.startswith("buffer_") else R[1]
        elif op.startswith("s_"):
            self.kind = "salu"
            if op == "s_nop":
                self.states = int(ops[0], 0) + 1
            elif op.startswith(("s_branch", "s_cbranch")):
                self.kind = "branch"; self.target = ops[0]
            elif op.startswith(("s_waitcnt", "s_barrier", "s_endpgm", "s_setprio", "s_sleep")):
                pass
            elif op.startswith(("s_getreg", "s_getpc")):
                self.wr = R[0]
            elif op.startswith("s_cmp") or op.startswith("s_bitcmp"):
                self.rd = set().union(*R)
            elif op.startswith(("s_load", "s_buffer_load", "s_memtime", "s_memrealtime")):
                self.kind = "smem"; self.wr = R[0]; self.rd = set().union(*R[1:]) if len(R) > 1 else set()
            else:
                self.wr = R[0]; self.rd = set().union(*R[1:]) if len(R) > 1 else set()
                if "saveexec" in op: self.wr = self.wr | {"exec"}
        else:
            raise ValueError("unknown instruction: " + text)

def isvg(r): return r[0] in "va" and r != "vcc"
def issg(r): return r[0] == "s" or r == "vcc"

def need_states(p, c):
    n = 0
    pv = p.kind in ("valu", "trans")
    cv = c.kind in ("valu", "trans")
    if pv:
        vw = {r for r in p.wr if isvg(r)}
        sw = {r for r in p.wr if issg(r)}
        if c.kind == "mfma" and vw & c.rd: n = max(n, 2)
        if c.kind == "mfma" and "exec" in p.wr: n = max(n, 4)
        if p.kind == "trans" and vw & c.rd and c.kind != "trans": n = max(n, 1)
        if p.kind == "trans" and vw & c.rd: n = max(n, 1)
        if cv and vw & c.rd:
            if c.op.startswith(("v_readlane", "v_readfirstlane")): n = max(n, 1)
            if c.op.startswith("v_permlane"): n = max(n, 2)
            if "dpp" in c.text or "row_" in c.text or "quad_perm" in c.text: n = max(n, 2)
            if "sdwa" in p.op or ("op_sel" in p.text and not p.op.startswith("v_pk_")): n = max(n, 1)
        if sw:
            if c.kind == "vmem" and sw & c.rd: n = max(n, 5)
            if cv and sw & c.rd:
                n = max(n, 4 if c.op.startswith(("v_readlane", "v_writelane", "v_div_fmas")) else 2)
            if c.kind in ("salu", "branch", "smem") and sw & c.rd: n = max(n, 1)
            if c.kind == "branch" and "vcc" in sw and "vcc" in c.op: n = max(n, 5)
        if "exec" in p.wr:
            if cv: n = max(n, 4)
    if p.kind == "mfma":
        big = {8: 12, 4: 8}[p.passes]
        ovl = {8: 10, 4: 6}[p.passes]
        war = {8: 7, 4: 3}[p.passes]
        if c.kind == "mfma":
            if p.wr & c.srcAB: n = max(n, big)
            if p.wr & c.srcC:
                if not (p.wr == c.srcC and p.passes == c.passes): n = max(n, ovl)
            elif p.wr & c.wr:
                n = max(n, ovl)
        else:
            if p.wr & (c.rd | c.wr): n = max(n, big)
            if cv and p.srcC & c.wr: n = max(n, war)
    if p.kind == "salu" and "m0" in p.wr and c.lds_dma: n = max(n, 1)
    if p.wide_store and p.wide_store & c.wr:
        n = max(n, 2 if cv else 1)
    return n

MAXW = 20

class Asm:
    def __init__(self):
        self.ins = []
        self.vm = []
        self.lg = []
    def __call__(self, text):
        for line in text.split("\n"):
            line = line.strip()
            if not line or line.startswith(";"): continue
            self.ins.append(Ins(line))
        return self
    def label(self, name): self.ins.append(Ins(name + ":"))
    def vmem(self, text, tok=None):
        self(text); self.vm.append(tok)
    def lds(self, text, tok=None):
        self(text); self.lg.append(tok)
    def _cnt(self, q, tok):
        idx = max((i for i, t in enumerate(q) if t == tok), default=None)
        if idx is None: return None
        return len(q) - 1 - idx
    def wait_vm(self, tok):
        n = self._cnt(self.vm, tok)
        if n is None: return
        assert n <= 63
        self(f"s_waitcnt vmcnt({n})")
        del self.vm[:len(self.vm) - n]
    def wait_lg(self, tok):
        n = self._cnt(self.lg, tok)
        if n is None: return
        n = min(n, 15)
        self(f"s_waitcnt lgkmcnt({n})")
        del self.lg[:len(self.lg) - n]
    def wait_all(self, vm=True, lg=True):
        s = "s_waitcnt"
        if vm: s += " vmcnt(0)"; self.vm = []
        if lg: s += " lgkmcnt(0)"; self.lg = []
        self(s)
    def fix(self, verbose=False):
        out = []
        added = 0
        def required(seq_before, c):
            need = 0; dist = 0
            for p in reversed(seq_before):
                if dist >= MAXW: break
                if p.states:
                    n = need_states(p, c)
                    if n > dist: need = max(need, n - dist)
                dist += p.states
            return need
        def nops(k):
            r = []
            while k > 0:
                m = min(k, 16); r.append(Ins(f"s_nop {m-1}")); k -= m
            return r
        for c in self.ins:
            if c.states:
                k = required(out[-60:], c)
                if k:
                    pos = len(out)
                    while pos > 0 and out[pos - 1].kind == "label": pos -= 1
                    out[pos:pos] = nops(k); added += k
                    if verbose: print("nop", k, "before", c.text)
            out.append(c)
        changed = True
        while changed:
            changed = False
            labels = {x.label: i for i, x in enumerate(out) if x.kind == "label"}
            for i, b in enumerate(out):
                if b.kind != "branch" or b.target not in labels: continue
                j = labels[b.target]
                pre = out[max(0, i - 60):i + 1]
                seq = list(pre); dist = 0; worst = 0
                for c in out[j:j + 40]:
                    if dist >= MAXW: break
                    if c.states:
                        need = 0; d = dist
                        for p in reversed(pre):
                            if d >= MAXW: break
                            if p.states:
                                n = need_states(p, c)
                                if n > d: need = max(need, n - d)
                            d += p.states
                        worst = max(worst, need)
                    if c.kind == "branch" and c.op == "s_branch": break
                    dist += c.states
                if worst:
                    out[i:i] = nops(worst); added += worst
                    if verbose: print("nop", worst, "before branch", b.text)
                    changed = True
                    break
        self.ins = out
        return added
    def text(self):
        return "\n".join(("" if x.kind in ("label", "dir") else "    ") + x.text for x in self.ins) + "\n"

def vr(a, n=1):
    return f"v{a}" if n == 1 else f"v[{a}:{a+n-1}]"
def sr(a, n=1):
    return f"s{a}" if n == 1 else f"s[{a}:{a+n-1}]"

def interleave(main, side, start=0, end=None):
    if end is None: end = len(main)
    n = end - start
    out = []
    k = 0
    for i, m in enumerate(main):
        out.append(m)
        if start <= i < end:
            tgt = (len(side) * (i - start + 1) + n - 1) // n
            while k < tgt:
                out.append(side[k]); k += 1
    while k < len(side):
        out.append(side[k]); k += 1
    return out

def kdesc(name, nvgpr, nsgpr=102, accum=None):
    if accum is None: accum = min(256, (nvgpr + 3) // 4 * 4)
    return f""".amdhsa_kernel {name}
  .amdhsa_next_free_vgpr {nvgpr}
  .amdhsa_next_free_sgpr {nsgpr}
  .amdhsa_accum_offset {accum}
  .amdhsa_group_segment_fixed_size 0
  .amdhsa_kernarg_size 88
  .amdhsa_user_sgpr_count 2
  .amdhsa_user_sgpr_kernarg_segment_ptr 1
  .amdhsa_system_sgpr_workgroup_id_x 1
.end_amdhsa_kernel
"""
```

```python
from asmlib import *
from layout import *

VX = 112
ACC_G = 48
ACC_U = 80
AR = 32
NB = 4
LA = 4
V_LANE16 = 1
V_DMA = 2
V_RB0, V_RB1 = 3, 4
V_RA0, V_RA1 = 5, 6
V_C1 = 7
VT = 8
STG = 24576
R = 5
SCR = R * STG
LDS_L1 = SCR + 8 * 4096

S_X, S_W0, S_W1, S_WS = 4, 8, 12, 16
S_WAVE, S_MT, S_SL = 20, 21, 22
S_RD, S_WR = 23, 24
S_DO = 25
S_CNT = 26
S_HOFF = 27
S_XO = 28
S_M0B = 32
S_T = 33
S_DLEFT = 40
S_COL = 41
S_BM, S_BR = 42, 43
S_SCALE = 44
S_C2 = 45

def srd(a, d, src, nbytes):
    a(f"s_mov_b32 s{d}, s{src}\ns_mov_b32 s{d+1}, s{src+1}\ns_mov_b32 s{d+2}, {nbytes}\ns_mov_b32 s{d+3}, 0x00020000")

def ring_adv(a, s):
    a(f"s_add_u32 s{s}, s{s}, {STG}\ns_cmp_ge_u32 s{s}, {R*STG}\ns_cselect_b32 s{S_T}, {R*STG}, 0\ns_sub_u32 s{s}, s{s}, s{S_T}")

def dma_stage(a, srdreg, st, stride, tok):
    items = []
    for b in range(3):
        def f(b=b):
            a(f"s_add_u32 m0, s{S_WR}, s{S_M0B}" if b == 0 else f"s_add_u32 m0, m0, 8192")
            a(f"s_add_u32 s{S_T+1}, s{S_DO}, {(st*192 + b*64) * stride}")
            a.vmem(f"buffer_load_dwordx4 v{V_DMA}, s[{srdreg}:{srdreg+3}], s{S_T+1} offen lds", tok)
        items.append(f)
    def g():
        ring_adv(a, S_WR)
        a(f"s_sub_u32 s{S_DLEFT}, s{S_DLEFT}, 1\ns_cmp_eq_u32 s{S_DLEFT}, 0\ns_cselect_b32 s{S_T}, 0x40000000, 0\ns_or_b32 s{S_DO}, s{S_DO}, s{S_T}")
    items.append(g)
    return items

def rd_issue(a, m):
    mm = m % 72
    ks, t = mm // 2, mm % 2
    ksl = ks % 12
    buf = AR + 4 * (m % NB)
    va = V_RA0 if t == 0 else V_RA1
    a.lds(f"ds_read_b64_tr_b16 v[{buf}:{buf+1}], v{va} offset:{ksl*2048}", ("A", m % NB))
    a.lds(f"ds_read_b64_tr_b16 v[{buf+2}:{buf+3}], v{va} offset:{ksl*2048+512}", ("A", m % NB))

def stage_switch(a, vmwait):
    if callable(vmwait): vmwait()
    else: a(f"s_waitcnt vmcnt({vmwait})")
    a("s_barrier")
    a(f"v_add_u32 v{V_RA0}, s{S_RD}, v{V_RB0}\nv_add_u32 v{V_RA1}, s{S_RD}, v{V_RB1}")
    ring_adv(a, S_RD)

def phase(a, acc, swapped, side, dma, vmwaits, pre=None, last=False, xwait=None):
    pend = []
    for m in range(72):
        ks, t = m // 2, m % 2
        if pre and m in pre:
            for f in pre[m]: f()
        a.wait_lg(("A", m % NB))
        if xwait and t == 0: xwait(ks)
        buf = AR + 4 * (m % NB)
        d = acc + 16 * t
        A = f"v[{buf}:{buf+3}]"; B = f"v[{VX+4*ks}:{VX+4*ks+3}]"
        if not swapped: A, B = B, A
        c = "0" if ks == 0 else f"v[{d}:{d+15}]"
        a(f"v_mfma_f32_32x32x16_bf16 v[{d}:{d+15}], {A}, {B}, {c}")
        nm = m + LA
        if nm % 24 == 0:
            si = nm // 24 - 1
            if not (last and nm == 72):
                stage_switch(a, vmwaits[si])
                pend += dma[si]
        if not (last and nm >= 72):
            rd_issue(a, nm)
        if pend:
            pend.pop(0)()
        for f in side.get(m, []): f()
    while pend: pend.pop(0)()

def spread(items, start, end):
    d = {}
    n = end - start
    for i, it in enumerate(items):
        d.setdefault(start + i * n // len(items), []).append(it)
    return d

def gelu_items(a):
    items = []
    for g in range(8):
        xs = [ACC_G + 4 * g + i for i in range(4)]
        ts = [VT + 4 * (g % 2) + i for i in range(4)]
        seq = []
        seq += [f"v_mul_f32 v{t}, v{x}, v{x}" for x, t in zip(xs, ts)]
        seq += [f"v_fma_f32 v{t}, v{t}, s{S_C2}, v{V_C1}" for x, t in zip(xs, ts)]
        seq += [f"v_mul_f32 v{t}, v{t}, v{x}" for x, t in zip(xs, ts)]
        seq += [f"v_exp_f32 v{t}, v{t}" for x, t in zip(xs, ts)]
        seq += [f"v_add_f32 v{t}, 1.0, v{t}" for x, t in zip(xs, ts)]
        seq += [f"v_rcp_f32 v{t}, v{t}" for x, t in zip(xs, ts)]
        seq += [f"v_mul_f32 v{x}, v{t}, v{x}" for x, t in zip(xs, ts)]
        items += [(lambda s=s: a(s)) for s in seq]
    return items

def fin_mul(a, t):
    return [(lambda i=i: a(f"v_mul_f32 v{ACC_U+16*t+i}, v{ACC_G+16*t+i}, v{ACC_U+16*t+i}")) for i in range(16)]

STORE_FLAGS = ""
def fin_store(a):
    items = []
    for t in range(2):
        b = ACC_U + 16 * t
        for j in range(2):
            for i in range(4):
                k = 4 * j + i
                items.append(lambda k=k, b=b: a(f"v_cvt_pk_bf16_f32 v{b+k}, v{b+2*k}, v{b+2*k+1}"))
            items.append(lambda j=j, b=b, t=t: a.vmem(f"buffer_store_dwordx4 v[{b+4*j}:{b+4*j+3}], v{V_LANE16}, s[{S_WS}:{S_WS+3}], s{S_HOFF} offen offset:{t*2048+j*1024}{STORE_FLAGS}", "st"))
    items.append(lambda: a(f"s_add_u32 s{S_HOFF}, s{S_HOFF}, 4096"))
    return items

STAMP = False
STAMP_OFF = 200*1024*1024
def stamp(a, idx):
    if not STAMP: return
    a(f"s_memtime s[{60+2*idx}:{61+2*idx}]")
def stamp_out(a, n):
    if not STAMP: return
    a("s_waitcnt vmcnt(0) lgkmcnt(0)")
    a(f"s_memtime s[{60+2*n}:{61+2*n}]")
    a(f"s_memrealtime s[{60+2*10}:{61+2*10}]")
    a("s_waitcnt lgkmcnt(0)")
    a(f"s_lshl_b32 s33, s2, 3\ns_add_u32 s33, s33, s{S_WAVE}\ns_lshl_b32 s33, s33, 6\ns_add_u32 s33, s33, {STAMP_OFF}")
    a("v_mov_b32 v9, 0")
    for i in range(11):
        a(f"v_mov_b32 v8, s{60+2*i}")
        a(f"buffer_store_dword v8, v9, s[{S_WS}:{S_WS+3}], s33 offen offset:{4*i}")

def gen(name):
    a = Asm()
    a(f"s_cmp_ge_u32 s2, 256\ns_cbranch_scc1 L1_END")
    stamp(a, 0)
    if STAMP:
        a(f"s_memrealtime s[{60+2*9}:{61+2*9}]")
        for i in range(1, 9): a(f"s_mov_b32 s{60+2*i}, 0")
    a("s_load_dwordx4 s[48:51], s[0:1], 0")
    a("s_load_dwordx4 s[52:55], s[0:1], 32")
    a("s_load_dwordx2 s[56:57], s[0:1], 80")
    a("s_load_dwordx2 s[58:59], s[0:1], 56")
    a(f"""
    v_lshrrev_b32 v8, 6, v0
    v_and_b32 v0, 63, v0
    v_readfirstlane_b32 s{S_WAVE}, v8
    s_and_b32 s33, s2, 7            ; xcd
    s_lshr_b32 s34, s2, 3           ; j
    s_and_b32 s35, s33, 1
    s_lshl_b32 s35, s35, 2
    s_and_b32 s36, s34, 3
    s_add_u32 s{S_MT}, s35, s36     ; mtile
    s_lshr_b32 s33, s33, 1          ; xn
    s_lshr_b32 s{S_SL}, s34, 2      ; s (0..7)
    v_lshlrev_b32 v{V_LANE16}, 4, v0
    v_lshrrev_b32 v9, 3, v0
    v_and_b32 v10, 7, v0            ; chunk
    v_mul_u32_u24 v11, 1152, v9
    v_lshl_add_u32 v11, v10, 4, v11     ; v11 = x voffset
    v_lshlrev_b32 v12, 1, v9
    v_and_b32 v12, 4, v12
    v_xor_b32 v12, v12, v10
    v_lshlrev_b32 v12, 4, v12       ; seg*16
    v_and_b32 v13, 15, v0
    v_lshrrev_b32 v14, 2, v13       ; r
    v_and_b32 v13, 3, v13           ; c
    v_lshrrev_b32 v15, 5, v0        ; hf
    v_lshl_add_u32 v15, v15, 3, v14 ; 8hf + r
    v_lshlrev_b32 v15, 7, v15
    v_lshl_add_u32 v15, v13, 3, v15 ; + c*8
    v_and_b32 v13, 16, v0
    v_lshl_add_u32 v15, v13, 1, v15 ; + nh*32
    v_and_b32 v14, 2, v14
    v_lshl_add_u32 v{V_RB0}, v14, 5, v15   ; + ((r>>1)&1)*64
    v_xor_b32 v{V_RB1}, 64, v{V_RB0}
    v_mov_b32 v{V_C1}, {hex(f2u(GC1))}
    s_mov_b32 s{S_C2}, {hex(f2u(GC2))}
    s_lshl_b32 s{S_M0B}, s{S_WAVE}, 10
    s_mov_b32 s{S_RD}, 0
    s_mov_b32 s{S_WR}, 0
    s_lshl_b32 s37, s{S_MT}, 3
    s_add_u32 s37, s37, s{S_WAVE}
    s_mul_i32 s{S_XO}, s37, {32*1152}
    s_add_u32 s{S_XO+1}, s{S_XO}, {8*1152}
    s_add_u32 s{S_XO+2}, s{S_XO}, {16*1152}
    s_add_u32 s{S_XO+3}, s{S_XO}, {24*1152}
    """)
    XW = ACC_U; XR = ACC_U + 2
    a(f"""
    v_lshrrev_b32 v13, 4, v0
    v_xor_b32 v13, v13, v10
    v_lshlrev_b32 v13, 4, v13
    v_lshl_add_u32 v13, v9, 7, v13
    s_lshl_b32 s38, s{S_WAVE}, 12
    s_add_u32 s38, s38, {SCR}
    v_add_u32 v{XW}, s38, v13
    v_xor_b32 v{XW+1}, 64, v{XW}
    v_and_b32 v13, 31, v0             ; tok
    v_lshrrev_b32 v14, 1, v13
    v_and_b32 v14, 7, v14
    v_lshrrev_b32 v15, 5, v0
    v_xor_b32 v14, v14, v15
    v_lshlrev_b32 v14, 4, v14
    v_lshl_add_u32 v14, v13, 7, v14
    v_add_u32 v{XR}, s38, v14
    v_xor_b32 v{XR+1}, 32, v{XR}
    v_xor_b32 v{XR+2}, 64, v{XR}
    v_xor_b32 v{XR+3}, 96, v{XR}
    s_waitcnt lgkmcnt(0)
    """)
    srd(a, S_X, 48, 2048 * 1152)
    srd(a, S_WS, 56, WS_SIZE)
    def xload(p):
        for q in range(4):
            r = VX + 4 * (4 * p + q)
            a.vmem(f"buffer_load_dwordx4 v[{r}:{r+3}], v11, s[{S_X}:{S_X+3}], s{S_XO+q} offen offset:{128*p}", ("X", p))
    def xtrans(p):
        a.wait_vm(("X", p))
        for q in range(4):
            r = VX + 4 * (4 * p + q)
            a.lds(f"ds_write_b128 v{XW+(q&1)}, v[{r}:{r+3}] offset:{q*1024}", "xw")
        for s in range(4):
            r = VX + 4 * (4 * p + s)
            a.lds(f"ds_read_b128 v[{r}:{r+3}], v{XR+s}", ("XT", p))
    a(f"s_cmp_ge_u32 s{S_SL}, 6\ns_cbranch_scc1 L1_QKV")

    ST = 9216
    srd(a, S_W0, 52, 576 * ST)
    srd(a, S_W1, 54, 576 * ST)
    a(f"""
    v_mul_u32_u24 v{V_DMA}, {ST}, v9
    v_add_u32 v{V_DMA}, v{V_DMA}, v12
    s_mul_i32 s33, s33, 6
    s_add_u32 s33, s33, s{S_SL}
    s_mul_i32 s{S_DO}, s33, 384
    s_mul_i32 s34, s{S_WAVE}, {8*ST}
    s_add_u32 s{S_DO}, s{S_DO}, s34
    s_mul_i32 s{S_HOFF}, s37, {288*1024}
    s_mul_i32 s34, s33, {12*1024}
    s_add_u32 s{S_HOFF}, s{S_HOFF}, s34
    s_mov_b32 s{S_DLEFT}, 18
    s_mov_b32 s{S_CNT}, 3
    """)
    coladv = lambda: a(f"s_add_u32 s{S_DO}, s{S_DO}, 128")
    xload(0)
    for f in dma_stage(a, S_W0, 0, ST, ("W", 0)): f()
    xload(1); xload(2)
    for f in dma_stage(a, S_W0, 1, ST, ("W", 1)): f()
    xload(3); xload(4); xload(5)
    for f in dma_stage(a, S_W0, 2, ST, ("W", 2)): f()
    xload(6); xload(7); xload(8)
    for f in dma_stage(a, S_W1, 0, ST, ("W", 3)): f()
    xtrans(0)
    stage_switch(a, lambda: a.wait_vm(("W", 0)))
    for m in range(LA): rd_issue(a, m)
    side = {}
    for p in range(1, 9):
        side.setdefault(max(0, 8 * p - 6), []).append(lambda p=p: xtrans(p))
    def xwait(ks):
        if ks % 4 == 0: a.wait_lg(("XT", ks // 4))
    dG = lambda base: [dma_stage(a, S_W1, 1, ST, ("W", base + 4)), dma_stage(a, S_W1, 2, ST, ("W", base + 5)) + [coladv], dma_stage(a, S_W0, 0, ST, ("W", base + 6))]
    dU = lambda base: [dma_stage(a, S_W0, 1, ST, ("W", base + 4)), dma_stage(a, S_W0, 2, ST, ("W", base + 5)), dma_stage(a, S_W1, 0, ST, ("W", base + 6))]
    stamp(a, 1)
    phase(a, ACC_G, True, side, dG(0), [lambda: a.wait_vm(("W", 1)), lambda: a.wait_vm(("W", 2)), lambda: a.wait_vm(("W", 3))], xwait=xwait)
    if STAMP:
        for it in range(3):
            stamp(a, 2 + 2 * it)
            a.vm = []
            phase(a, ACC_U, True, spread(gelu_items(a), 3, 70), dU(3), [6, 6, 6])
            stamp(a, 3 + 2 * it)
            if it < 2:
                phase(a, ACC_G, True, spread(fin_store(a), 3, 40), dG(6), [6, 6, 6], pre={0: fin_mul(a, 0), 1: fin_mul(a, 1)})
    else:
        a.label("L1_U")
        a.vm = []
        phase(a, ACC_U, True, spread(gelu_items(a), 3, 70), dU(3), [6, 6, 6])
        a(f"s_sub_u32 s{S_CNT}, s{S_CNT}, 1\ns_cmp_eq_u32 s{S_CNT}, 0\ns_cbranch_scc1 L1_FIN")
        phase(a, ACC_G, True, spread(fin_store(a), 3, 40), dG(6), [6, 6, 6], pre={0: fin_mul(a, 0), 1: fin_mul(a, 1)})
        a("s_branch L1_U")
        a.label("L1_FIN")
    for f in fin_mul(a, 0) + fin_mul(a, 1) + fin_store(a): f()
    stamp_out(a, 8)
    a("s_endpgm")

    a.label("L1_QKV")
    a.vm = []; a.lg = []
    ST = 3456
    srd(a, S_W0, 50, 576 * ST)
    a(f"""
    v_mul_u32_u24 v{V_DMA}, {ST}, v9
    v_add_u32 v{V_DMA}, v{V_DMA}, v12
    s_lshl_b32 s33, s33, 1
    s_add_u32 s33, s33, s{S_SL}
    s_sub_u32 s33, s33, 6
    s_lshl_b32 s34, s33, 2
    s_mul_i32 s35, s33, 3
    s_add_u32 s35, s35, 3
    s_cmp_le_u32 s33, 3
    s_cselect_b32 s34, s34, s35
    s_cmp_lt_u32 s33, 3
    s_cselect_b32 s{S_CNT}, 4, 3
    s_mul_i32 s{S_DLEFT}, s{S_CNT}, 3
    s_lshl_b32 s{S_COL}, s34, 6
    s_lshl_b32 s{S_DO}, s34, 7
    s_mul_i32 s35, s{S_WAVE}, {8*ST}
    s_add_u32 s{S_DO}, s{S_DO}, s35
    s_mov_b32 s{S_SL}, s33
    """)
    xload(0)
    for f in dma_stage(a, S_W0, 0, ST, ("W", 0)): f()
    for p in range(1, 9): xload(p)
    for f in dma_stage(a, S_W0, 1, ST, ("W", 1)): f()
    for f in dma_stage(a, S_W0, 2, ST, ("W", 2)) + [coladv]: f()
    for f in dma_stage(a, S_W0, 0, ST, ("W", 3)): f()
    for p in range(9): xtrans(p)
    a.wait_all(vm=False)
    stage_switch(a, lambda: a.wait_vm(("W", 0)))
    for m in range(LA): rd_issue(a, m)
    lg_entry = list(a.lg)
    stamp(a, 1)
    dQ = lambda: [dma_stage(a, S_W0, 1, ST, None), dma_stage(a, S_W0, 2, ST, None) + [coladv], dma_stage(a, S_W0, 0, ST, None)]
    a(f"s_cmp_ge_u32 s{S_SL}, 5\ns_cbranch_scc1 L1_V")
    a.label("L1_QK")
    phase(a, ACC_G, True, {}, dQ(), [6, 6, 6])
    stamp(a, 2)
    a(f"""
    s_cmp_ge_u32 s{S_COL}, 576
    s_cselect_b32 s{S_SCALE}, 1.0, {hex(f2u(QSCALE))}
    s_cselect_b32 s{S_BM}, {WS_KM-WS_QM}, 0
    s_cselect_b32 s34, 576, 0
    s_add_u32 s{S_BR}, s{S_BM}, {WS_QR}
    s_add_u32 s{S_BM}, s{S_BM}, {WS_QM}
    s_sub_u32 s34, s{S_COL}, s34
    s_lshl_b32 s35, s37, 10
    s_add_u32 s{S_BM}, s{S_BM}, s35       ; + T*1024
    s_lshr_b32 s35, s37, 2
    s_lshl_b32 s35, s35, 9
    s_add_u32 s{S_BR}, s{S_BR}, s35
    s_and_b32 s35, s37, 3
    s_lshl_b32 s35, s35, 2
    s_add_u32 s{S_BR}, s{S_BR}, s35
    v_lshrrev_b32 v8, 5, v0
    v_lshl_add_u32 v8, v8, 2, s34
    v_and_b32 v9, 31, v0
    v_lshlrev_b32 v9, 4, v9               ; tok*16
    v_add_u32 v10, s{S_BM}, v9
    v_add_u32 v11, s{S_BR}, v9
    s_movk_i32 s35, 3641
    """)
    for t in range(2):
        for aa in range(4):
            for bp in range(2):
                r = ACC_G + 16 * t + 4 * aa + 2 * bp
                co = 32 * t + 8 * aa + 2 * bp
                a(f"""
                v_add_u32 v12, {co}, v8
                v_mul_u32_u24 v13, s35, v12
                v_lshrrev_b32 v13, 16, v13          ; h
                v_mul_u32_u24 v14, 18, v13
                v_sub_u32 v14, v12, v14             ; d = c - 18h
                v_lshl_add_u32 v15, v13, 16, v10
                v_and_b32 v16, 8, v14
                v_lshl_add_u32 v15, v16, 6, v15
                v_and_b32 v16, 7, v14
                v_lshl_add_u32 v15, v16, 1, v15
                v_lshl_add_u32 v16, v13, 13, v11    ; rem
                v_cmp_le_u32 vcc, 16, v14
                v_mul_f32 v{r}, s{S_SCALE}, v{r}
                v_mul_f32 v{r+1}, s{S_SCALE}, v{r+1}
                v_cndmask_b32 v15, v15, v16, vcc
                v_cvt_pk_bf16_f32 v17, v{r}, v{r+1}
                buffer_store_dword v17, v15, s[{S_WS}:{S_WS+3}], 0 offen
                """)
    a(f"s_add_u32 s{S_COL}, s{S_COL}, 64\ns_sub_u32 s{S_CNT}, s{S_CNT}, 1\ns_cmp_lg_u32 s{S_CNT}, 0\ns_cbranch_scc1 L1_QK")
    stamp_out(a, 8)
    a("s_endpgm")
    a.label("L1_V")
    a.lg = list(lg_entry)
    phase(a, ACC_G, False, {}, dQ(), [6, 6, 6])
    a(f"""
    s_sub_u32 s34, s{S_COL}, 1152
    s_mul_i32 s35, s37, 1280
    s_add_u32 s36, s35, {WS_V}
    v_and_b32 v8, 31, v0
    v_add_u32 v8, s34, v8                  ; c
    v_lshrrev_b32 v9, 5, v0
    v_mul_u32_u24 v9, 320, v9
    v_add_u32 v9, s36, v9
    s_movk_i32 s35, 3641
    s_mov_b32 s36, {64*1280}
    """)
    for t in range(2):
        b = ACC_G + 16 * t
        a(f"""
        v_add_u32 v12, {32*t}, v8
        v_mul_u32_u24 v13, s35, v12
        v_lshrrev_b32 v13, 16, v13          ; h
        v_mul_u32_u24 v14, 18, v13
        v_sub_u32 v14, v12, v14             ; d
        v_mul_u32_u24 v15, s36, v13
        v_add_u32 v15, v15, v9
        v_lshl_add_u32 v15, v14, 4, v15
        """)
        for k in range(8):
            a(f"v_cvt_pk_bf16_f32 v{16+k}, v{b+2*k}, v{b+2*k+1}")
        a(f"buffer_store_dwordx4 v[16:19], v15, s[{S_WS}:{S_WS+3}], 0 offen")
        a(f"buffer_store_dwordx4 v[20:23], v15, s[{S_WS}:{S_WS+3}], 0 offen offset:640")
    a(f"s_add_u32 s{S_COL}, s{S_COL}, 64\ns_sub_u32 s{S_CNT}, s{S_CNT}, 1\ns_cmp_lg_u32 s{S_CNT}, 0\ns_cbranch_scc1 L1_V")
    a(f"s_cmp_lg_u32 s{S_SL}, 7\ns_cbranch_scc1 L1_END")
    srd(a, S_W1, 58, 1152)
    a("s_waitcnt vmcnt(0) lgkmcnt(0)")
    a("v_lshrrev_b32 v8, 5, v0\nv_lshlrev_b32 v8, 4, v8")
    a.vm = []
    GB = [8 + 4 * i for i in range(1, 6)] + [32, 36, 40, 44] + [80 + 4 * i for i in range(8)]
    for rnd in range(3):
        for i in range(12):
            ks = rnd * 12 + i
            a.vmem(f"buffer_load_dwordx4 v[{GB[i]}:{GB[i]+3}], v8, s[{S_W1}:{S_W1+3}], 0 offen offset:{ks*32}", i)
        for i in range(12):
            ks = rnd * 12 + i
            a.wait_vm(i)
            c = "0" if ks == 0 else f"v[{ACC_G}:{ACC_G+15}]"
            a(f"v_mfma_f32_32x32x16_bf16 v[{ACC_G}:{ACC_G+15}], v[{GB[i]}:{GB[i]+3}], v[{VX+4*ks}:{VX+4*ks+3}], {c}")
    a(f"""
    v_mul_f32 v9, {hex(f2u(-math.log2(math.e)))}, v{ACC_G}
    v_exp_f32 v9, v9
    v_add_f32 v9, 1.0, v9
    v_rcp_f32 v9, v9
    v_and_b32 v10, 31, v0
    v_lshlrev_b32 v10, 2, v10
    s_lshl_b32 s34, s37, 7
    s_add_u32 s34, s34, {WS_G}
    buffer_store_dword v9, v10, s[{S_WS}:{S_WS+3}], s34 offen
    """)
    a.label("L1_END")
    a("s_endpgm")
    n = a.fix()
    return a, n

if __name__ == "__main__":
    import sys
    if "stamp" in sys.argv: STAMP = True
    a, n = gen("l1_kernel")
    print("nops added", n, "instrs", len(a.ins))
    nm = "l1_kernel"
    open("l1s.s" if STAMP else "l1.s", "w").write(f"; @launch kernel={nm} grid=(256,1,1) block=(512,1,1) lds={LDS_L1}\n" + '.amdgcn_target "amdgcn-amd-amdhsa--gfx950"\n.text\n' + f".globl {nm}\n.p2align 8\n.type {nm},@function\n{nm}:\n" + a.text() + '\n.section .rodata,"a"\n.p2align 6\n' + kdesc(nm, 256))
```

```python
from asmlib import *
from layout import *

NG = 256
NA = 512
LDS_L2 = 52 * 1024
S_WS = 4
S_WD = 8
S_WAVE = 20

def srd(a, d, src, nbytes):
    a(f"s_mov_b32 s{d}, s{src}\ns_mov_b32 s{d+1}, s{src+1}\ns_mov_b32 s{d+2}, {nbytes}\ns_mov_b32 s{d+3}, 0x00020000")

V_L16, V_KR, V_V = 1, 2, 3
V_M = 4
V_T = 8
QM = 12
QR = 28
OA = 44
SB = 96
PB = 128
KV = 136
S_KM, S_KR, S_V = 21, 22, 23
S_KM0, S_KR0, S_V0 = 24, 25, 26
S_CNT, S_NMAX = 27, 28
S_VM = 30
S_H, S_QB = 32, 33

def oacc(i): return f"v[{OA+12*i}:{OA+12*i+15}]"
def kmain(b): return f"v[{KV+16*b}:{KV+16*b+3}]"
def krem(b): return f"v[{KV+16*b+4}:{KV+16*b+7}]"
def vfr(b, j): return f"v[{KV+16*b+8+4*j}:{KV+16*b+11+4*j}]"
def sbuf(s): return f"v[{SB+16*s}:{SB+16*s+15}]"

def load_k(a, b, jpos, tok):
    a.vmem(f"buffer_load_dwordx4 {kmain(b)}, v{V_L16}, s[{S_WS}:{S_WS+3}], s{S_KM} offen", tok)
    a.vmem(f"buffer_load_dword v{KV+16*b+4}, v{V_KR}, s[{S_WS}:{S_WS+3}], s{S_KR} offen", tok)
    a(f"s_add_u32 s{S_KM}, s{S_KM}, 1024")
    a(f"s_add_u32 s{S_KR}, s{S_KR}, 4\ns_and_b32 s34, s{S_KR}, 12\ns_cmp_eq_u32 s34, 0\ns_cselect_b32 s34, 496, 0\ns_add_u32 s{S_KR}, s{S_KR}, s34")
def load_v(a, b, tok):
    a(f"s_mov_b64 exec, s[{S_VM}:{S_VM+1}]")
    a.vmem(f"buffer_load_dwordx4 {vfr(b,0)}, v{V_V}, s[{S_WS}:{S_WS+3}], s{S_V} offen", tok)
    a.vmem(f"buffer_load_dwordx4 {vfr(b,1)}, v{V_V}, s[{S_WS}:{S_WS+3}], s{S_V} offen offset:640", tok)
    a(f"s_mov_b64 exec, -1")
    a(f"s_add_u32 s{S_V}, s{S_V}, 1280")

def qk1(a, s, b, i): a(f"v_mfma_f32_32x32x16_bf16 {sbuf(s)}, {kmain(b)}, v[{QM+4*i}:{QM+4*i+3}], 0")
def qk2(a, s, b, i): a(f"v_mfma_f32_32x32x16_bf16 {sbuf(s)}, {krem(b)}, v[{QR+4*i}:{QR+4*i+3}], {sbuf(s)}")
def pv(a, b, i, j): a(f"v_mfma_f32_32x32x16_bf16 {oacc(i)}, {vfr(b,j)}, v[{PB+4*j}:{PB+4*j+3}], {oacc(i)}")

def attn_body(a):
    for t in range(8):
        b, i, s = t // 4, t % 4, t % 2
        S = SB + 16 * s
        e = lambda k: a(f"v_exp_f32 v{S+k}, v{S+k}")
        c = lambda k: a(f"v_cvt_pk_bf16_f32 v{PB+k}, v{S+2*k}, v{S+2*k+1}")
        pb, pi = ((t - 1) % 8) // 4, (t - 1) % 4
        nb, ni = ((t + 1) % 8) // 4, (t + 1) % 4
        e(0); e(1)
        pv(a, pb, pi, 1)
        if i == 0: load_v(a, 1 - b, ("V", 1 - b))
        e(2); e(3); c(0); e(4)
        if ni == 0: a.wait_vm(("K", nb))
        qk1(a, 1 - s, nb, ni)
        e(5); c(1); e(6); e(7); c(2)
        qk2(a, 1 - s, nb, ni)
        if ni == 3: load_k(a, nb, None, ("K", nb))
        e(8); e(9); c(3); e(10); e(11); c(4)
        if i == 0: a.wait_vm(("V", b))
        pv(a, b, i, 0)
        e(12); e(13); c(5); e(14); e(15); c(6); c(7)

def gen_attn(a):
    a.label("L2_ATT")
    a(f"""
    s_setprio 3
    s_sub_u32 s34, s2, {NG}
    s_and_b32 s35, s34, 7
    s_lshr_b32 s34, s34, 3            ; 0..63
    s_lshr_b32 s36, s34, 4
    s_lshl_b32 s35, s35, 2
    s_add_u32 s{S_H}, s35, s36        ; head
    s_and_b32 s{S_QB}, s34, 15
    v_lshlrev_b32 v{V_L16}, 4, v0
    v_and_b32 v8, 31, v0
    v_lshlrev_b32 v{V_KR}, 4, v8
    v_lshrrev_b32 v9, 5, v0
    v_mul_u32_u24 v10, 320, v9
    v_add_u32 v{V_V}, v10, v{V_KR}
    s_mov_b32 s{S_VM}, 0x3ffff
    s_mov_b32 s{S_VM+1}, 0x3ffff
    ; Q loads
    s_lshl_b32 s34, s{S_H}, 16
    s_lshl_b32 s35, s{S_QB}, 12
    s_add_u32 s35, s35, s34
    s_add_u32 s35, s35, {WS_QM}
    s_lshl_b32 s36, s{S_H}, 13
    s_lshl_b32 s37, s{S_QB}, 9
    s_add_u32 s37, s37, s36
    s_add_u32 s37, s37, {WS_QR}
    """)
    for i in range(4):
        a(f"buffer_load_dwordx4 v[{QM+4*i}:{QM+4*i+3}], v{V_L16}, s[{S_WS}:{S_WS+3}], s35 offen offset:{1024*i}")
        a(f"buffer_load_dword v{QR+4*i}, v{V_KR}, s[{S_WS}:{S_WS+3}], s37 offen offset:{4*i}")
    a(f"""
    s_lshl_b32 s35, s{S_WAVE}, 14
    s_add_u32 s{S_KM0}, s34, s35
    s_add_u32 s{S_KM0}, s{S_KM0}, {WS_KM}
    s_lshl_b32 s35, s{S_WAVE}, 11
    s_add_u32 s{S_KR0}, s36, s35
    s_add_u32 s{S_KR0}, s{S_KR0}, {WS_KR}
    s_lshl_b32 s34, s{S_H}, 6
    s_lshl_b32 s35, s{S_WAVE}, 4
    s_add_u32 s34, s34, s35
    s_mul_i32 s{S_V0}, s34, 1280
    s_add_u32 s{S_V0}, s{S_V0}, {WS_V}
    s_mov_b32 s{S_NMAX}, 1
    ; constants
    v_cmp_eq_u32 vcc, 18, v8
    v_mov_b32 v10, 0x3f803f80
    v_cndmask_b32 v11, 0, v10, vcc
    """)
    for b in range(2):
        a(f"v_mov_b32 v{KV+16*b+5}, v10\nv_mov_b32 v{KV+16*b+6}, 0\nv_mov_b32 v{KV+16*b+7}, 0")
        for k in range(8): a(f"v_mov_b32 v{KV+16*b+8+k}, v11")
    for i in range(4):
        a(f"v_mov_b32 v{QR+4*i+2}, 0\nv_mov_b32 v{QR+4*i+3}, 0")
    a("s_waitcnt vmcnt(0)")
    a("v_cmp_gt_u32 vcc, 32, v0")
    for i in range(4):
        a(f"v_cndmask_b32 v{QR+4*i}, 0, v{QR+4*i}, vcc")
    a.label("L2_MAXP")
    a(f"s_mov_b32 s{S_KM}, s{S_KM0}\ns_mov_b32 s{S_KR}, s{S_KR0}\ns_mov_b32 s{S_CNT}, s{S_NMAX}")
    for i in range(4):
        a(f"v_mov_b32 v{QR+4*i+1}, 0\nv_mov_b32 v{V_M+i}, 0xff800000")
    a.label("L2_MAXL")
    a.vm = []
    load_k(a, 0, None, "k")
    a.wait_vm("k")
    for i in range(4):
        qk1(a, i % 2, 0, i); qk2(a, i % 2, 0, i)
        if i > 0:
            S = SB + 16 * ((i - 1) % 2)
            for k in range(8): a(f"v_max3_f32 v{V_M+i-1}, v{S+2*k}, v{S+2*k+1}, v{V_M+i-1}")
    S = SB + 16
    for k in range(8): a(f"v_max3_f32 v{V_M+3}, v{S+2*k}, v{S+2*k+1}, v{V_M+3}")
    a(f"s_sub_u32 s{S_CNT}, s{S_CNT}, 1\ns_cmp_lg_u32 s{S_CNT}, 0\ns_cbranch_scc1 L2_MAXL")
    a(f"s_mov_b32 s{S_KM}, s{S_KM0}\ns_mov_b32 s{S_KR}, s{S_KR0}\ns_mov_b32 s{S_V}, s{S_V0}")
    a.vm = []
    load_k(a, 0, None, ("K", 0))
    load_v(a, 0, ("V", 0))
    load_k(a, 1, None, ("K", 1))
    a("v_cmp_gt_u32 vcc, 32, v0")
    for i in range(4):
        m = V_M + i
        a(f"""
        v_mov_b32 v8, v{m}
        v_mov_b32 v9, v{m}
        v_permlane32_swap_b32 v8, v9
        v_max_f32 v{m}, v8, v9
        v_sub_f32 v8, 0, v{m}                 ; -m
        v_and_b32 v9, 0xffff0000, v8          ; hi
        v_sub_f32 v8, v8, v9                  ; r1
        v_and_b32 v10, 0xffff0000, v8         ; mid
        v_sub_f32 v8, v8, v10
        v_lshrrev_b32 v9, 16, v9
        v_or_b32 v9, v9, v10                  ; [mid:hi]
        v_lshrrev_b32 v8, 16, v8              ; [0:lo]
        v_cndmask_b32 v{QR+4*i+1}, v8, v9, vcc
        """)
    for k in range(52): a(f"v_mov_b32 v{OA+k}, 0")
    for k in range(4, 8): a(f"v_mov_b32 v{PB+k}, 0")
    a.wait_vm(("K", 0))
    qk1(a, 0, 0, 0); qk2(a, 0, 0, 0)
    a(f"s_mov_b32 s{S_CNT}, 8")
    a("s_nop 7\ns_nop 3")
    a.label("L2_AL")
    vm0 = list(a.vm)
    n0 = len(a.ins)
    attn_body(a)
    txt1 = [x.text for x in a.ins[n0:]]
    b2 = Asm(); b2.vm = list(a.vm); attn_body(b2)
    txt2 = [x.text for x in b2.ins]
    if txt1 != txt2:
        for x, y in zip(txt1, txt2):
            if x != y: print("ATT steady mismatch:", x, "|", y)
        raise SystemExit(1)
    a(f"s_sub_u32 s{S_CNT}, s{S_CNT}, 1\ns_cmp_lg_u32 s{S_CNT}, 0\ns_cbranch_scc1 L2_AL")
    pv(a, 1, 3, 1)
    a("s_waitcnt vmcnt(0)")
    a("v_mov_b32 v8, 0")
    for i in range(4):
        for k in range(11):
            a(f"v_fma_f32 v8, v{OA+12*i+k}, 0, v8")
    a(f"""
    v_min_f32 v9, v{OA+10}, v{OA+22}
    v_min3_f32 v9, v{OA+34}, v{OA+46}, v9
    v_max_f32 v10, v{OA+10}, v{OA+22}
    v_max3_f32 v10, v{OA+34}, v{OA+46}, v10
    v_cmp_eq_f32 s[34:35], 0, v8
    v_cmp_lt_f32 vcc, {hex(f2u(2.0**-30))}, v9
    s_or_b32 vcc_hi, vcc_hi, -1
    s_and_b64 s[34:35], s[34:35], vcc
    v_cmp_gt_f32 vcc, {hex(f2u(2.0**30))}, v10
    s_and_b64 s[34:35], s[34:35], vcc
    s_cmp_eq_u64 s[34:35], -1
    s_cbranch_scc1 L2_AOK
    s_cmp_eq_u32 s{S_NMAX}, 16
    s_cbranch_scc1 L2_AOK
    s_mov_b32 s{S_NMAX}, 16
    s_branch L2_MAXP
    """)
    a.label("L2_AOK")
    a(f"""
    s_mul_i32 s34, s{S_WAVE}, {4*3328}
    v_add_u32 v8, s34, v{V_L16}
    v_lshlrev_b32 v9, 2, v0
    v_add_u32 v9, s34, v9
    """)
    for i in range(4):
        for ch in range(3):
            a(f"ds_write_b128 v8, v[{OA+12*i+4*ch}:{OA+12*i+4*ch+3}] offset:{i*3328+ch*1024}")
        a(f"ds_write_b32 v9, v{V_M+i} offset:{i*3328+3072}")
    a("s_waitcnt lgkmcnt(0)\ns_barrier")
    a(f"""
    s_mul_i32 s34, s{S_WAVE}, 3328
    v_add_u32 v8, s34, v{V_L16}
    v_lshlrev_b32 v9, 2, v0
    v_add_u32 v9, s34, v9
    v_add_u32 v10, s34, v{V_KR}
    """)
    R0 = 12
    for w in range(4):
        for ch in range(3):
            a(f"ds_read_b128 v[{R0+16*w+4*ch}:{R0+16*w+4*ch+3}], v8 offset:{w*4*3328+ch*1024}")
        a(f"ds_read_b32 v{R0+16*w+12}, v9 offset:{w*4*3328+3072}")
        a(f"ds_read_b32 v{R0+16*w+13}, v10 offset:{w*4*3328+2048+8}")
    a("s_waitcnt lgkmcnt(0)")
    a(f"v_max_f32 v8, v{R0+12}, v{R0+28}\nv_max3_f32 v8, v{R0+44}, v{R0+60}, v8")
    for w in range(4):
        a(f"v_sub_f32 v{R0+16*w+12}, v{R0+16*w+12}, v8")
    for w in range(4):
        a(f"v_exp_f32 v{R0+16*w+12}, v{R0+16*w+12}")
    a(f"v_mul_f32 v9, v{R0+13}, v{R0+12}")
    for w in range(1, 4):
        a(f"v_fma_f32 v9, v{R0+16*w+13}, v{R0+16*w+12}, v9")
    a("v_rcp_f32 v9, v9")
    for w in range(4):
        a(f"v_mul_f32 v{R0+16*w+12}, v{R0+16*w+12}, v9")
    for k in range(10):
        a(f"v_mul_f32 v{R0+k}, v{R0+k}, v{R0+12}")
        for w in range(1, 4):
            a(f"v_fma_f32 v{R0+k}, v{R0+16*w+k}, v{R0+16*w+12}, v{R0+k}")
    for k in range(5):
        a(f"v_cvt_pk_bf16_f32 v{R0+16+k}, v{R0+2*k}, v{R0+2*k+1}")
    a(f"""
    s_lshl_b32 s34, s{S_QB}, 2
    s_add_u32 s34, s34, s{S_WAVE}
    s_mul_i32 s34, s34, {36*1024}
    s_add_u32 s34, s34, {WS_O}
    s_lshl_b32 s35, s{S_H}, 10
    s_add_u32 s35, s35, s34
    buffer_store_dwordx4 v[{R0+16}:{R0+19}], v{V_L16}, s[{S_WS}:{S_WS+3}], s35 offen
    s_lshr_b32 s35, s{S_H}, 2
    s_lshl_b32 s35, s35, 9
    s_add_u32 s34, s34, s35
    s_and_b32 s35, s{S_H}, 3
    s_lshl_b32 s35, s35, 2
    s_add_u32 s34, s34, s35
    s_add_u32 s34, s34, {32*1024}
    s_mov_b32 exec_hi, 0
    buffer_store_dword v{R0+20}, v{V_L16}, s[{S_WS}:{S_WS+3}], s34 offen
    s_endpgm
    """)

G_ACC = 72
G_AR = 40
G_B = 24
G_NB, G_LA = 8, 7
G_RB0, G_RB1, G_DMA = 2, 3, 4
GS_DO, GS_BO, GS_M0, GS_CNT, GS_PO = 21, 22, 23, 24, 25
GSTG = 12288; GR = 4

def g_rd(a, m):
    mm = m % 48
    st, r = mm // 12, mm % 12
    ksl, nt = r // 6, r % 6
    buf = G_AR + 4 * (m % G_NB)
    va = G_RB0 if nt % 2 == 0 else G_RB1
    off = st * GSTG + (nt // 2) * 4096 + ksl * 2048
    a.lds(f"ds_read_b64_tr_b16 v[{buf}:{buf+1}], v{va} offset:{off}", ("A", m % G_NB))
    a.lds(f"ds_read_b64_tr_b16 v[{buf+2}:{buf+3}], v{va} offset:{off+1024}", ("A", m % G_NB))
def g_dma(a, slot, tok):
    items = []
    for c in range(3):
        def f(c=c):
            a(f"s_add_u32 m0, s{GS_M0}, {slot*GSTG + c*4096 - c*128}")
            a.vmem(f"buffer_load_dwordx4 v{G_DMA}, s[{S_WD}:{S_WD+3}], s{GS_DO} offen offset:{c*128} lds", tok)
            if c == 2: a(f"s_add_u32 s{GS_DO}, s{GS_DO}, {32*1152}")
        items.append(f)
    return items
def g_bload(a, k):
    b = G_B + 4 * (k % 4)
    a.vmem(f"buffer_load_dwordx4 v[{b}:{b+3}], v{V_L16}, s[{S_WS}:{S_WS+3}], s{GS_BO} offen", ("B", k % 4))
    a(f"s_add_u32 s{GS_BO}, s{GS_BO}, 1024")
def g_body(a):
    pend = []
    for m in range(48):
        st, r = m // 12, m % 12
        ksl, nt = r // 6, r % 6
        k = st * 2 + ksl
        a.wait_lg(("A", m % G_NB))
        if nt == 0: a.wait_vm(("B", k % 4))
        buf = G_AR + 4 * (m % G_NB); b = G_B + 4 * (k % 4); d = G_ACC + 16 * nt
        a(f"v_mfma_f32_32x32x16_bf16 v[{d}:{d+15}], v[{buf}:{buf+3}], v[{b}:{b+3}], v[{d}:{d+15}]")
        nm = m + G_LA
        if nm % 12 == 0:
            ns = (nm // 12) % 4
            a.wait_vm(("W", ns))
            a("s_barrier")
            pend += g_dma(a, (ns + 2) % 4, ("W", (ns + 2) % 4))
        g_rd(a, nm)
        if pend: pend.pop(0)()
        if nt == 5: g_bload(a, k)
        if r == 11:
            a(f"s_sub_u32 s{GS_CNT}, s{GS_CNT}, 1\ns_cmp_eq_u32 s{GS_CNT}, 0\ns_cbranch_scc1 L2_GE")
    assert not pend

def gen_gemm2(a):
    a(f"""
    s_and_b32 s34, s2, 7
    s_lshr_b32 s35, s2, 3              ; 0..29
    s_mul_i32 s36, s35, 43
    s_lshr_b32 s36, s36, 7             ; /3 -> 0..9
    s_mul_i32 s37, s36, 3
    s_sub_u32 s37, s35, s37            ; nb 0..2
    s_mul_i32 s34, s34, 10
    s_add_u32 s34, s34, s36            ; combo 0..79
    s_lshr_b32 s35, s34, 4
    s_and_b32 s34, s34, 15             ; mt
    s_lshl_b32 s34, s34, 2
    s_add_u32 s34, s34, s{S_WAVE}      ; T
    s_mul_i32 s36, s35, 29
    s_cmp_eq_u32 s35, 4
    s_cselect_b32 s{GS_CNT}, 28, 29
    s_mul_i32 s{GS_BO}, s34, 288
    s_lshl_b32 s38, s36, 1
    s_add_u32 s{GS_BO}, s{GS_BO}, s38
    s_lshl_b32 s{GS_BO}, s{GS_BO}, 10
    s_lshl_b32 s38, s36, 2
    s_add_u32 s38, s38, s{S_WAVE}
    s_mul_i32 s{GS_DO}, s38, {8*1152}
    s_mul_i32 s38, s37, 384
    s_add_u32 s{GS_DO}, s{GS_DO}, s38
    s_lshl_b32 s{GS_M0}, s{S_WAVE}, 10
    s_lshl_b32 s38, s35, 6
    s_add_u32 s38, s38, s34
    s_mul_i32 s38, s38, 18
    s_mul_i32 s39, s37, 6
    s_add_u32 s38, s38, s39
    s_lshl_b32 s{GS_PO}, s38, 12
    s_add_u32 s{GS_PO}, s{GS_PO}, {WS_P}
    v_lshlrev_b32 v{V_L16}, 4, v0
    v_lshrrev_b32 v9, 3, v0
    v_and_b32 v10, 7, v0
    v_lshlrev_b32 v12, 1, v9
    v_and_b32 v12, 4, v12
    v_xor_b32 v12, v12, v10
    v_lshlrev_b32 v12, 4, v12
    v_mul_u32_u24 v{G_DMA}, 1152, v9
    v_add_u32 v{G_DMA}, v{G_DMA}, v12
    v_and_b32 v13, 15, v0
    v_lshrrev_b32 v14, 2, v13       ; r
    v_and_b32 v13, 3, v13           ; c
    v_lshrrev_b32 v15, 5, v0        ; hf
    v_lshl_add_u32 v15, v15, 2, v14 ; 4hf + r
    v_lshlrev_b32 v15, 7, v15
    v_lshl_add_u32 v15, v13, 3, v15
    v_and_b32 v13, 16, v0
    v_lshl_add_u32 v15, v13, 1, v15
    v_and_b32 v14, 2, v14
    v_lshl_add_u32 v{G_RB0}, v14, 5, v15
    v_xor_b32 v{G_RB1}, 64, v{G_RB0}
    """)
    a.vm = []; a.lg = []
    for f in g_dma(a, 0, ("W", 0)): f()
    for st in (1, 2):
        items = g_dma(a, st, ("W", st))
        items[0](); g_bload(a, 2 * st - 2); items[1](); items[2](); g_bload(a, 2 * st - 1)
    for k in range(96): a(f"v_mov_b32 v{G_ACC+k}, 0")
    a.wait_vm(("W", 0))
    a("s_barrier")
    for m in range(G_LA): g_rd(a, m)
    a.label("L2_GL")
    n0 = len(a.ins)
    g_body(a)
    txt1 = [x.text for x in a.ins[n0:]]
    b2 = Asm(); b2.vm = list(a.vm); b2.lg = list(a.lg); g_body(b2)
    txt2 = [x.text for x in b2.ins]
    if txt1 != txt2:
        for x, y in zip(txt1, txt2):
            if x != y: print("G steady mismatch:", x, "|", y)
        raise SystemExit(1)
    a("s_branch L2_GL")
    a.label("L2_GE")
    for nt in range(6):
        for ch in range(4):
            d = G_ACC + 16 * nt + 4 * ch
            a(f"buffer_store_dwordx4 v[{d}:{d+3}], v{V_L16}, s[{S_WS}:{S_WS+3}], s{GS_PO} offen offset:{ch*1024}")
        a(f"s_add_u32 s{GS_PO}, s{GS_PO}, 4096")
    a("s_endpgm")

def gen_wo(a):
    a.label("L2_WO")
    srd(a, S_WD, 52, 576 * 1152)
    a(f"""
    s_sub_u32 s34, s2, 240
    s_mul_i32 s35, s34, {36*1152}
    s_lshl_b32 s36, s{S_WAVE}, 10
    s_add_u32 s35, s35, s36
    v_lshlrev_b32 v{V_L16}, 4, v0
    """)
    for i in range(11):
        a(f"s_add_u32 m0, s36, {i*4096}")
        a(f"buffer_load_dwordx4 v{V_L16}, s[{S_WD}:{S_WD+3}], s35 offen lds")
        a(f"s_add_u32 s35, s35, 4096")
    a(f"""
    v_and_b32 v13, 15, v0
    v_lshrrev_b32 v14, 2, v13       ; r
    v_and_b32 v13, 3, v13           ; c
    v_lshrrev_b32 v15, 5, v0        ; hf
    v_lshl_add_u32 v16, v15, 2, v14 ; 4hf + r
    v_mul_u32_u24 v16, 1152, v16
    v_lshlrev_b32 v13, 3, v13
    v_and_b32 v17, 16, v0
    v_lshl_add_u32 v13, v17, 1, v13
    v_add_u32 v16, v16, v13
    v_lshrrev_b32 v17, 1, v14
    v_mul_u32_u24 v17, 18, v17
    v_and_b32 v18, 1, v14
    v_add3_u32 v17, v17, v18, 16
    v_mul_u32_u24 v17, 1152, v17
    v_add_u32 v17, v17, v13
    s_lshl_b32 s37, s{S_WAVE}, 6
    v_add_u32 v16, s37, v16
    v_add_u32 v17, s37, v17
    s_mul_i32 s38, s{S_WAVE}, {36*1024}
    s_add_u32 s38, s38, {WS_WO}
    s_lshl_b32 s39, s34, 11
    s_add_u32 s39, s39, s38
    s_lshr_b32 s40, s34, 1           ; h>>2
    s_lshl_b32 s40, s40, 9
    s_add_u32 s40, s40, s38
    s_and_b32 s41, s34, 1
    s_lshl_b32 s41, s41, 3
    s_add_u32 s40, s40, s41
    s_add_u32 s40, s40, {32*1024}
    v_and_b32 v18, 31, v0
    v_lshlrev_b32 v18, 4, v18
    s_waitcnt vmcnt(0)
    s_barrier
    """)
    for it in range(5):
        if it == 4:
            a(f"s_cmp_ge_u32 s{S_WAVE}, 2\ns_cbranch_scc1 L2_END")
        for hh in range(2):
            a(f"ds_read_b64_tr_b16 v[{20+4*hh}:{21+4*hh}], v16 offset:{it*256 + hh*18*1152}")
            a(f"ds_read_b64_tr_b16 v[{22+4*hh}:{23+4*hh}], v16 offset:{it*256 + hh*18*1152 + 8*1152}")
        a(f"ds_read_b64_tr_b16 v[28:29], v17 offset:{it*256}")
        a("s_waitcnt lgkmcnt(0)")
        a(f"buffer_store_dwordx4 v[20:23], v{V_L16}, s[{S_WS}:{S_WS+3}], s39 offen")
        a(f"buffer_store_dwordx4 v[24:27], v{V_L16}, s[{S_WS}:{S_WS+3}], s39 offen offset:1024")
        a(f"buffer_store_dwordx2 v[28:29], v18, s[{S_WS}:{S_WS+3}], s40 offen")
        a(f"s_add_u32 s39, s39, {4*36*1024}\ns_add_u32 s40, s40, {4*36*1024}")
        a("s_waitcnt vmcnt(0)")
    a("s_endpgm")

def gen():
    a = Asm()
    a(f"s_cmp_ge_u32 s2, {NG+NA}\ns_cbranch_scc1 L2_END")
    a("s_load_dwordx2 s[48:49], s[0:1], 80")
    a("s_load_dwordx2 s[50:51], s[0:1], 48")
    a("s_load_dwordx2 s[52:53], s[0:1], 16")
    a(f"v_lshrrev_b32 v8, 6, v0\nv_and_b32 v0, 63, v0\nv_readfirstlane_b32 s{S_WAVE}, v8")
    a("s_waitcnt lgkmcnt(0)")
    srd(a, S_WS, 48, WS_SIZE)
    a(f"s_cmp_ge_u32 s2, {NG}\ns_cbranch_scc1 L2_ATT")
    a(f"s_cmp_ge_u32 s2, 240\ns_cbranch_scc1 L2_WO")
    srd(a, S_WD, 50, 4608 * 1152)
    gen_gemm2(a)
    gen_wo(a)
    gen_attn(a)
    a.label("L2_END")
    a("s_endpgm")
    n = a.fix()
    return a, n
if __name__ == "__main__":
    a, n = gen()
    print("nops", n, "instrs", len(a.ins))
```

```python
from asmlib import *
from layout import *
LDS_L3 = 72 * 1024 + 6 * 4096
S_WS, S_OUT = 4, 8
S_WAVE = 20
def srd(a, d, src, nbytes):
    a(f"s_mov_b32 s{d}, s{src}\ns_mov_b32 s{d+1}, s{src+1}\ns_mov_b32 s{d+2}, {nbytes}\ns_mov_b32 s{d+3}, 0x00020000")
AF = 16
PF = 88
ACC = PF + 16 * NSPLIT
BB = ACC + 32
NV3 = BB + 32
def gen():
    a = Asm()
    a("s_cmp_ge_u32 s2, 192\ns_cbranch_scc1 L3_END")
    a("s_load_dwordx2 s[48:49], s[0:1], 80")
    a("s_load_dwordx2 s[50:51], s[0:1], 64")
    a(f"""
    v_lshrrev_b32 v8, 6, v0
    v_and_b32 v0, 63, v0
    v_readfirstlane_b32 s{S_WAVE}, v8
    v_lshlrev_b32 v1, 4, v0
    s_and_b32 s21, s2, 7
    s_lshr_b32 s22, s2, 3             ; 0..23
    s_mul_i32 s23, s22, 43
    s_lshr_b32 s23, s23, 8            ; /6
    s_mul_i32 s24, s23, 6
    s_sub_u32 s24, s22, s24           ; nrange 0..5
    s_lshl_b32 s21, s21, 2
    s_add_u32 s21, s21, s23           ; Tpair 0..31
    s_cmp_ge_u32 s{S_WAVE}, 3
    s_cselect_b32 s25, 1, 0           ; kh
    s_mul_i32 s26, s25, 3
    s_sub_u32 s26, s{S_WAVE}, s26
    s_mul_i32 s27, s24, 3
    s_add_u32 s27, s27, s26           ; ntile 0..17
    s_lshl_b32 s28, s21, 1
    s_add_u32 s28, s28, s25           ; final T
    s_mul_i32 s29, s21, {72*1024}
    s_mul_i32 s30, s{S_WAVE}, {12*1024}
    s_add_u32 s29, s29, s30
    s_add_u32 s29, s29, {WS_O}
    s_mul_i32 s31, s27, 36
    s_mul_i32 s32, s25, 18
    s_add_u32 s31, s31, s32
    s_lshl_b32 s31, s31, 10
    s_add_u32 s31, s31, {WS_WO}
    s_mul_i32 s33, s28, 18
    s_add_u32 s33, s33, s27
    s_lshl_b32 s33, s33, 12
    s_add_u32 s33, s33, {WS_P}
    s_lshl_b32 s34, s28, 7
    s_add_u32 s34, s34, {WS_G}
    v_and_b32 v2, 31, v0
    v_lshlrev_b32 v3, 2, v2
    s_waitcnt lgkmcnt(0)
    """)
    srd(a, S_WS, 48, WS_SIZE)
    srd(a, S_OUT, 50, 2048 * 1152)
    for i in range(3):
        a(f"s_add_u32 m0, s30, {i*4096}")
        for j in range(4):
            a.vmem(f"buffer_load_dwordx4 v1, s[{S_WS}:{S_WS+3}], s29 offen offset:{j*1024} lds", "B")
        a("s_add_u32 s29, s29, 4096")
    for k in range(18):
        a.vmem(f"buffer_load_dwordx4 v[{AF+4*k}:{AF+4*k+3}], v1, s[{S_WS}:{S_WS+3}], s31 offen offset:{(k%4)*1024}", ("A", k))
        if k % 4 == 3: a("s_add_u32 s31, s31, 4096")
    a.vmem(f"buffer_load_dword v4, v3, s[{S_WS}:{S_WS+3}], s34 offen", "g")
    for s in range(NSPLIT):
        for ch in range(4):
            a.vmem(f"buffer_load_dwordx4 v[{PF+16*s+4*ch}:{PF+16*s+4*ch+3}], v1, s[{S_WS}:{S_WS+3}], s33 offen offset:{ch*1024}", ("P", s))
        a(f"s_add_u32 s33, s33, {64*18*4096}")
    a(f"s_mul_i32 s35, s25, {18*1024}\nv_add_u32 v5, s35, v1")
    a.wait_vm("B")
    a("s_barrier")
    def brd(m):
        k, t = m // 2, m % 2
        b = BB + 4 * (m % 8)
        a.lds(f"ds_read_b128 v[{b}:{b+3}], v5 offset:{t*36*1024 + k*1024}", ("b", m % 8))
    for m in range(7): brd(m)
    for m in range(36):
        k, t = m // 2, m % 2
        a.wait_lg(("b", m % 8))
        if t == 0: a.wait_vm(("A", k))
        b = BB + 4 * (m % 8); d = ACC + 16 * t
        c = "0" if k == 0 else f"v[{d}:{d+15}]"
        a(f"v_mfma_f32_32x32x16_bf16 v[{d}:{d+15}], v[{AF+4*k}:{AF+4*k+3}], v[{b}:{b+3}], {c}")
        if m + 7 < 36: brd(m + 7)
    for s in range(1, NSPLIT):
        a.wait_vm(("P", s))
        for r in range(16): a(f"v_add_f32 v{PF+r}, v{PF+r}, v{PF+16*s+r}")
    a(f"""
    s_lshl_b32 s35, s{S_WAVE}, 12
    s_add_u32 s35, s35, {72*1024}
    v_add_u32 v6, s35, v1
    s_mov_b32 s37, {-3*4096 & 0xffffffff}
    s_cmp_eq_u32 s25, 0
    s_cselect_b32 s36, {3*4096}, s37
    v_add_u32 v7, s36, v6
    s_cbranch_scc1 L3_K0
    """)
    for ch in range(4): a(f"ds_write_b128 v6, v[{ACC+4*ch}:{ACC+4*ch+3}] offset:{ch*1024}")
    for r in range(16): a(f"v_mov_b32 v{ACC+r}, v{ACC+16+r}")
    a("s_branch L3_X")
    a.label("L3_K0")
    for ch in range(4): a(f"ds_write_b128 v6, v[{ACC+16+4*ch}:{ACC+16+4*ch+3}] offset:{ch*1024}")
    a.label("L3_X")
    a("s_waitcnt lgkmcnt(0)\ns_barrier")
    for ch in range(4): a(f"ds_read_b128 v[{BB+4*ch}:{BB+4*ch+3}], v7 offset:{ch*1024}")
    a("v_sub_f32 v8, 1.0, v4")
    for r in range(16): a(f"v_mul_f32 v{PF+r}, v{PF+r}, v8")
    a(f"""
    v_mul_u32_u24 v9, 1152, v2
    v_lshrrev_b32 v10, 5, v0
    v_lshl_add_u32 v9, v10, 4, v9
    s_mul_i32 s35, s28, {32*1152}
    s_lshl_b32 s36, s27, 6
    s_add_u32 s35, s35, s36
    s_waitcnt lgkmcnt(0)
    """)
    for r in range(16): a(f"v_add_f32 v{ACC+r}, v{ACC+r}, v{BB+r}")
    for r in range(16): a(f"v_fma_f32 v{ACC+r}, v{ACC+r}, v4, v{PF+r}")
    for k in range(8): a(f"v_cvt_pk_bf16_f32 v{AF+k}, v{ACC+2*k}, v{ACC+2*k+1}")
    for ap in range(2):
        a(f"v_permlane32_swap_b32 v{AF+4*ap}, v{AF+4*ap+2}")
        a(f"v_permlane32_swap_b32 v{AF+4*ap+1}, v{AF+4*ap+3}")
    for ap in range(2):
        a(f"buffer_store_dwordx4 v[{AF+4*ap}:{AF+4*ap+3}], v9, s[{S_OUT}:{S_OUT+3}], s35 offen offset:{ap*32}")
    a.label("L3_END")
    a("s_endpgm")
    n = a.fix()
    return a, n
```

```python
WS_H  = 0
WS_QM = 18874368
WS_QR = WS_QM + 2097152
WS_KM = WS_QR + 262144
WS_KR = WS_KM + 2097152
WS_V  = WS_KR + 262144
WS_O  = WS_V + 32*64*1280
WS_WO = WS_O + 64*36*1024
WS_G  = WS_WO + 18*36*1024
WS_P  = WS_G + 8192
NSPLIT = 5
WS_END = WS_P + NSPLIT*64*18*4096
WS_SIZE = 268435456
import math
QSCALE = (18 ** -0.5) * math.log2(math.e)
GC1 = -2.0 * math.sqrt(2.0 / math.pi) * math.log2(math.e)
GC2 = GC1 * 0.044715
import struct
def f2u(x): return struct.unpack("<I", struct.pack("<f", x))[0]
```

```python
import sys, importlib
import gen_l1, gen_l2, gen_l3
from asmlib import *
HDR = open("gated_mix__softmax_full_mha__geglu_ffn__prompt.s.ref").read().split("; Override launch")[0]
def build(path):
    a1, _ = gen_l1.gen("l1_kernel")
    a2, _ = gen_l2.gen()
    a3, _ = gen_l3.gen()
    ks = [("l1_kernel", a1, 256, 512, gen_l1.LDS_L1, 256),
          ("l2_kernel", a2, gen_l2.NG + gen_l2.NA, 256, gen_l2.LDS_L2, 168),
          ("l3_kernel", a3, 192, 384, gen_l3.LDS_L3, gen_l3.NV3)]
    s = HDR
    for nm, a, g, b, lds, nv in ks:
        s += f"; @launch kernel={nm} grid=({g},1,1) block=({b},1,1) lds={lds}\n"
    s += '.amdgcn_target "amdgcn-amd-amdhsa--gfx950"\n.text\n'
    for nm, a, g, b, lds, nv in ks:
        s += f".globl {nm}\n.p2align 8\n.type {nm},@function\n{nm}:\n" + a.text()
    s += '.section .rodata,"a"\n.p2align 6\n'
    for nm, a, g, b, lds, nv in ks:
        s += kdesc(nm, nv)
    open(path, "w").write(s)
if __name__ == "__main__":
    build(sys.argv[1] if len(sys.argv) > 1 else "full.s")
```

```python
from asmlib import *
from layout import *
import stamp as stm

VX = 112
ACC = [48, 80]
AR = 16; NB = 8; LA = 7
V_L16, V_DMA = 1, 2
V_XD = [3, 15]
V_RB = 4
V_C1 = 10
V_XR = 11
VT = [11, 12, 13, 14, 15, 3, 0]
LDS_L1 = 160 * 1024
SLOT_J = [0, 3, 6, 9, 12, 15]

S_X, S_W0, S_W1, S_WS = 4, 8, 12, 16
S_WAVE, S_MT, S_SL = 20, 21, 22
S_T = 23
S_M0B = 24
S_HOFF = 25
S_C2 = 26
S_CNT = 27
S_COL = 28
S_XB = 29
S_TMP = 30
S_WR = 36
S_XP = 88
S_SC, S_QB = 45, 46

def srd(a, d, src, nbytes):
    a(f"s_mov_b32 s{d}, s{src}\ns_mov_b32 s{d+1}, s{src+1}\ns_mov_b32 s{d+2}, {nbytes}\ns_mov_b32 s{d+3}, 0x00020000")

STORE_FLAGS = ""
XFREE = 4
import os
FINE = os.environ.get('FINE') == '1'
FSLOTS = [int(x) for x in os.environ.get('FSLOTS', '').split()]

MAXOUT = int(os.environ.get("MAXOUT", 12))
XLEAD = int(os.environ.get("XLEAD", 4))
PERSLOT = int(os.environ.get("PERSLOT", 2))
WLEAD = int(os.environ.get("WLEAD", 24))
PRE2 = int(os.environ.get("PRE2", 4))
OPENG = int(os.environ.get("OPENG", 3))
PRIO = int(os.environ.get("PRIO", 0))
ABL = os.environ.get("ABL", "")
MERGE = os.environ.get("MERGE", "0 1 0 0 1 0 0 1 0 0 1 0 0")
class Prog:
    XJ = [12, 16]
    def __init__(self, a, phases, merge):
        self.a = a; self.ph = phases
        n = len(phases)
        units = []
        if merge:
            nx = [0, 0]
            for c in MERGE.split():
                units.append((int(c), nx[int(c)])); nx[int(c)] += 1
            assert nx[0] == 9
            units += [(1, p) for p in range(nx[1], 9)]
            self.g_end = 8 * len(MERGE.split())
            first = 2
        else:
            first = 0
        for p in range(first, n): units += [(p, q) for q in range(9)]
        self.units = units
        self.slots = [(p, 4 * q + k, t) for (p, q) in units for k in range(4) for t in range(2)]

    def emit(self, side, pre, exits):
        a = self.a
        N = len(self.slots)
        U = self.units
        first_use = {u: 8 * i for i, u in enumerate(U)}
        xfirst = {}
        for i, (p, q) in enumerate(U): xfirst.setdefault(q, 8 * i)
        need = [(max(first_use[u] - WLEAD, 0.5 if first_use[u] else 0), 1, ("W", u)) for u in U] + [(xfirst[q], 2, ("X", q)) for q in range(9)]
        need.sort(key=lambda e: (e[0], e[1]))
        queue = []
        for e in need:
            if e[2][0] == "W": queue.append((e[2], 0))
            else: queue += [(e[2], q) for q in range(4)]
        free = list(range(12))
        busy = []
        jof = {}; issue_pos = {}
        xdone = set(); xread = set(); opened = set()
        cur = [0]
        prio = {}
        def can_issue():
            if not queue: return False
            (kind, v), q = queue[0]
            if kind == "W": return bool(free)
            return v < 2 or (v - 2) in xdone
        def issue():
            (kind, v), q = queue.pop(0)
            if kind == "W":
                j = free.pop(0); jof[v] = j; busy.append((v, j)); issue_pos[v] = cur[0]
                ph = self.ph[v[0]]
                a(f"s_add_u32 m0, s{S_M0B}, {j * 8192}")
                a(f"s_add_u32 s{S_TMP}, s{S_WR + v[1]}, {ph['col']}")
                if "d" in ABL and v[0] >= 2: a.vm.append(("W", v)); a.vm.remove(("W", v))
                else: a.vmem(f"buffer_load_dwordx4 v{V_DMA}, s[{ph['srd']}:{ph['srd']+3}], s{S_TMP} offen lds", ("W", v))
            else:
                a(f"s_add_u32 m0, s{S_M0B}, {(self.XJ[v % 2] + q) * 8192}")
                a(f"s_add_u32 s{S_TMP}, s{S_XP + v}, {q * 8 * 1152}")
                a.vmem(f"buffer_load_dwordx4 v{V_XD[q & 1]}, s[{S_X}:{S_X+3}], s{S_TMP} offen lds", ("X", v))
        def nout(): return sum(1 for t in a.vm if t != "st")
        def pump(k, lim=None):
            while k > 0 and can_issue() and nout() < (lim or MAXOUT):
                issue(); k -= 1
        def ensure(tok):
            while any(e[0] == tok for e in queue):
                assert can_issue(), ("not issuable", tok, queue[0])
                issue()
        def do_xread(q):
            ensure(("X", q))
            a.wait_vm(("X", q))
            for s in range(4):
                r = VX + 4 * (4 * q + s)
                a.lds(f"ds_read_b128 v[{r}:{r+3}], v{V_XR+s} offset:{(q % 2) * 32768}", ("XT", q))
            xread.add(q)
        def open_unit(u):
            ensure(("W", u))
            i = U.index(u)
            grp = [u]
            for v in U[i + 1:i + OPENG]:
                if v in issue_pos and (cur[0] - issue_pos[v] >= 24 or ("W", v) not in a.vm): grp.append(v)
                else: break
            a.wait_vm(("W", grp[-1]))
            if not ("b" in ABL and u[0] >= 2): a("s_barrier")
            opened.update(grp)
            if PRIO:
                n = 8 * len(grp)
                a("s_setprio 3")
                prio.clear()
                for lv in (1, 2, 3): prio[cur[0] + n * lv // 4] = 3 - lv
            for (v, j) in list(busy):
                if first_use[v] + 7 < cur[0]:
                    busy.remove((v, j)); free.append(j)
        def rd(m):
            p, k, t = self.slots[m]
            u = (p, k // 4)
            if u not in opened: open_unit(u)
            j = jof[u]
            va = V_RB + 2 * (j // 8) + t
            off = (j % 8) * 8192 + (k % 4) * 2048
            buf = AR + 4 * (m % NB)
            a.lds(f"ds_read_b64_tr_b16 v[{buf}:{buf+1}], v{va} offset:{off}", ("A", m % NB))
            if "l" not in ABL: a.lds(f"ds_read_b64_tr_b16 v[{buf+2}:{buf+3}], v{va} offset:{off+512}", ("A", m % NB))
        if FINE: stm.stamp(a, 2)
        pump(5)
        a("s_barrier")
        pump(PRE2, 99)
        if FINE: stm.stamp(a, 3)
        do_xread(0)
        pump(4)
        if FINE: stm.stamp(a, 4)
        for m in range(LA): rd(m)
        stm.stamp(a, 5 if FINE else 1)
        for m in range(N):
            p, k, t = self.slots[m]
            for f in pre.get(m, []): f()
            a.wait_lg(("A", m % NB))
            if k // 4 not in xdone: a.wait_lg(("XT", k // 4))
            for q in xread:
                if q not in xdone and ("XT", q) not in a.lg:
                    xdone.add(q)
                    if q >= 7: free.extend(range(self.XJ[q % 2], self.XJ[q % 2] + 4))
            buf = AR + 4 * (m % NB)
            d = ACC[p % 2] + 16 * t
            A = f"v[{buf}:{buf+3}]"; B = f"v[{VX+4*k}:{VX+4*k+3}]"
            if not self.ph[p]["swapped"]: A, B = B, A
            c = "0" if k == 0 else f"v[{d}:{d+15}]"
            a(f"v_mfma_f32_32x32x16_bf16 v[{d}:{d+15}], {A}, {B}, {c}")
            cur[0] = m + 1
            if cur[0] in prio: a(f"s_setprio {prio[cur[0]]}")
            if m + LA < N: rd(m + LA)
            for q in range(9):
                if q not in xread and xfirst[q] - XLEAD <= m: do_xread(q)
            pump(PERSLOT)
            for f in side.get(m, []): f()
            if m in exits: exits[m]()
            if FINE:
                if m == 15: stm.stamp(a, 6)
                if m == 47: stm.stamp(a, 7)
            elif FSLOTS:
                if m + 1 in FSLOTS: stm.stamp(a, 2 + FSLOTS.index(m + 1))
            elif (m + 1) % 72 == 0 and (m + 1) // 72 <= 6: stm.stamp(a, 1 + (m + 1) // 72)

def spread(d, items, start, end):
    n = end - start
    for i, it in enumerate(items):
        d.setdefault(start + i * n // len(items), []).append(it)
    return d

def gelu_items(a, G, n=32):
    items = []
    if "g" in ABL: return [lambda: None]
    for g in range(n // 4):
        xs = [G + 4 * g + i for i in range(4)]
        ts = VT[:4]
        seq = []
        seq += [f"v_mul_f32 v{t}, v{x}, v{x}" for x, t in zip(xs, ts)]
        seq += [f"v_fma_f32 v{t}, v{t}, s{S_C2}, v{V_C1}" for x, t in zip(xs, ts)]
        seq += [f"v_mul_f32 v{t}, v{t}, v{x}" for x, t in zip(xs, ts)]
        seq += [f"v_exp_f32 v{t}, v{t}" for x, t in zip(xs, ts)]
        seq += [f"v_add_f32 v{t}, 1.0, v{t}" for x, t in zip(xs, ts)]
        seq += [f"v_rcp_f32 v{t}, v{t}" for x, t in zip(xs, ts)]
        seq += [f"v_mul_f32 v{x}, v{t}, v{x}" for x, t in zip(xs, ts)]
        items += [(lambda s=s: a(s)) for s in seq]
    return items
def fin_mul(a, t):
    G, U = ACC
    return [(lambda i=i: a(f"v_mul_f32 v{U+16*t+i}, v{G+16*t+i}, v{U+16*t+i}")) for i in range(16)]
def fin_store(a):
    items = []
    for t in range(2):
        b = ACC[1] + 16 * t
        for j in range(2):
            for i in range(4):
                k = 4 * j + i
                items.append(lambda k=k, b=b: a(f"v_cvt_pk_bf16_f32 v{b+k}, v{b+2*k}, v{b+2*k+1}"))
            items.append(lambda j=j, b=b, t=t: a.vmem(f"buffer_store_dwordx4 v[{b+4*j}:{b+4*j+3}], v{V_L16}, s[{S_WS}:{S_WS+3}], s{S_HOFF} offen offset:{t*2048+j*1024}{STORE_FLAGS}", "st"))
    items.append(lambda: a(f"s_add_u32 s{S_HOFF}, s{S_HOFF}, 4096"))
    return items

def qk_epi(a, acc):
    L = []
    L.append(f"""s_cmp_ge_u32 s{S_COL}, 576
    s_cselect_b32 s{S_SC}, 1.0, {hex(f2u(QSCALE))}
    s_cselect_b32 s{S_QB}, {WS_K - WS_Q}, 0
    s_cselect_b32 s{S_TMP+1}, 576, 0
    s_sub_u32 s{S_TMP+1}, s{S_COL}, s{S_TMP+1}
    s_add_u32 s{S_QB}, s{S_QB}, s{S_HOFF}
    s_add_u32 s{S_COL}, s{S_COL}, 64""")
    for t in range(2):
        for aa in range(4):
            for bp in range(2):
                r = acc + 16 * t + 4 * aa + 2 * bp
                co = 32 * t + 8 * aa + 2 * bp
                L += [f"v_add3_u32 v11, v10, s{S_TMP+1}, {co}",
                      f"v_mul_u32_u24 v12, s{S_TMP+2}, v11",
                      f"v_lshrrev_b32 v12, 16, v12",
                      f"v_mul_u32_u24 v13, 18, v12",
                      f"v_sub_u32 v13, v11, v13",
                      f"v_mad_u32_u24 v14, v12, s{S_TMP+3}, v0",
                      f"v_and_b32 v12, 24, v13",
                      f"v_lshl_add_u32 v14, v12, 6, v14",
                      f"v_and_b32 v12, 7, v13",
                      f"v_lshl_add_u32 v14, v12, 1, v14",
                      f"v_mul_f32 v{r}, s{S_SC}, v{r}",
                      f"v_mul_f32 v{r+1}, s{S_SC}, v{r+1}",
                      f"v_cvt_pk_bf16_f32 v{r}, v{r}, v{r+1}",
                      ("vm", f"buffer_store_dword v{r}, v14, s[{S_WS}:{S_WS+3}], s{S_QB} offen")]
    return [(lambda s=s: a.vmem(s[1], "st") if isinstance(s, tuple) else a(s)) for s in L]
def v_epi(a, acc):
    L = [f"s_sub_u32 s{S_TMP+1}, s{S_COL}, 1152\ns_add_u32 s{S_COL}, s{S_COL}, 64"]
    for t in range(2):
        b = acc + 16 * t
        L += [f"v_add3_u32 v11, v10, s{S_TMP+1}, {32*t}",
              f"v_mul_u32_u24 v12, s{S_TMP+2}, v11",
              f"v_lshrrev_b32 v12, 16, v12",
              f"v_mul_u32_u24 v13, 18, v12",
              f"v_sub_u32 v13, v11, v13",
              f"v_mad_u32_u24 v14, v12, s{S_TMP+3}, v0",
              f"v_lshl_add_u32 v14, v13, 4, v14"]
        L += [f"v_cvt_pk_bf16_f32 v{b+k}, v{b+2*k}, v{b+2*k+1}" for k in range(8)]
        L += [("vm", f"buffer_store_dwordx4 v[{b}:{b+3}], v14, s[{S_WS}:{S_WS+3}], s{S_HOFF} offen"),
              ("vm", f"buffer_store_dwordx4 v[{b+4}:{b+7}], v14, s[{S_WS}:{S_WS+3}], s{S_HOFF} offen offset:640")]
    return [(lambda s=s: a.vmem(s[1], "st") if isinstance(s, tuple) else a(s)) for s in L]

XPOS_MERGE = {0: 0, 1: 2, 2: 12, 3: 24, 4: 36, 5: 46, 6: 56, 7: 66, 8: 76}
XPOS_PLAIN = {0: 0, 1: 1, 2: 8, 3: 16, 4: 24, 5: 32, 6: 40, 7: 48, 8: 56}

def rows_setup(a, stride, scol):
    a(f"s_mul_i32 s{S_TMP}, s{S_WAVE}, {8*stride}\ns_add_u32 s{S_TMP}, s{S_TMP}, s{scol}")
    a(f"s_mov_b32 s{S_TMP+1}, s{S_TMP+4}")
    for p in range(9):
        a(f"s_mul_i32 s{S_WR+p}, s{S_TMP+1}, {64*stride}\ns_add_u32 s{S_WR+p}, s{S_WR+p}, s{S_TMP}")
        a(f"s_add_u32 s{S_TMP+1}, s{S_TMP+1}, 1\ns_cmp_eq_u32 s{S_TMP+1}, 9\ns_cselect_b32 s{S_TMP+1}, 0, s{S_TMP+1}")

def gen(name):
    a = Asm()
    a(f"s_cmp_ge_u32 s2, 256\ns_cbranch_scc1 L1_END")
    stm.begin(a)
    a("s_load_dwordx4 s[48:51], s[0:1], 0")
    a("s_load_dwordx4 s[52:55], s[0:1], 32")
    a("s_load_dwordx2 s[56:57], s[0:1], 80")
    a("s_load_dwordx2 s[58:59], s[0:1], 56")
    a(f"""
    v_lshrrev_b32 v16, 6, v0
    v_and_b32 v0, 63, v0
    v_readfirstlane_b32 s{S_WAVE}, v16
    s_and_b32 s30, s2, 7            ; xcd
    s_lshr_b32 s31, s2, 3           ; j
    s_and_b32 s32, s30, 1
    s_lshl_b32 s32, s32, 2
    s_and_b32 s33, s31, 3           ; m local
    s_add_u32 s{S_MT}, s32, s33     ; mtile
    s_lshr_b32 s35, s30, 1          ; xn
    s_lshr_b32 s{S_SL}, s31, 2      ; s (0..7)
    s_lshl_b32 s34, s33, 1
    s_add_u32 s34, s34, s{S_SL}
    s_cmp_ge_u32 s34, 9
    s_cselect_b32 s33, 9, 0
    s_sub_u32 s34, s34, s33         ; rotation r
    v_lshlrev_b32 v{V_L16}, 4, v0
    v_lshrrev_b32 v17, 3, v0
    v_and_b32 v18, 7, v0            ; position
    v_lshrrev_b32 v19, 4, v0
    v_xor_b32 v19, v19, v18
    v_lshlrev_b32 v19, 4, v19
    v_mul_u32_u24 v20, 1152, v17
    v_add_u32 v{V_XD[0]}, v20, v19
    v_xor_b32 v19, 64, v19
    v_add_u32 v{V_XD[1]}, v20, v19
    v_lshlrev_b32 v20, 1, v17
    v_and_b32 v20, 4, v20
    v_xor_b32 v20, v20, v18
    v_lshlrev_b32 v20, 4, v20       ; seg*16
    v_and_b32 v21, 15, v0
    v_lshrrev_b32 v22, 2, v21       ; r
    v_and_b32 v21, 3, v21           ; c
    v_lshrrev_b32 v23, 5, v0        ; hf
    v_lshl_add_u32 v24, v23, 3, v22 ; 8hf + r
    v_lshlrev_b32 v24, 7, v24
    v_lshl_add_u32 v24, v21, 3, v24
    v_and_b32 v21, 16, v0
    v_lshl_add_u32 v24, v21, 1, v24
    v_and_b32 v22, 2, v22
    v_lshl_add_u32 v{V_RB}, v22, 5, v24
    v_xor_b32 v{V_RB+1}, 64, v{V_RB}
    v_add_u32 v{V_RB+2}, 0x10000, v{V_RB}
    v_add_u32 v{V_RB+3}, 0x10000, v{V_RB+1}
    v_add_u32 v{V_RB+4}, 0x20000, v{V_RB}
    v_add_u32 v{V_RB+5}, 0x20000, v{V_RB+1}
    s_lshl_b32 s{S_M0B}, s{S_WAVE}, 10
    s_lshl_b32 s{S_T}, s{S_MT}, 3
    s_add_u32 s{S_T}, s{S_T}, s{S_WAVE}
    s_mul_i32 s{S_XB}, s{S_T}, {32*1152}
    v_and_b32 v21, 31, v0
    v_lshrrev_b32 v22, 1, v21
    v_and_b32 v22, 7, v22
    v_xor_b32 v22, v22, v23
    v_lshlrev_b32 v22, 4, v22
    v_and_b32 v24, 7, v21
    v_lshl_add_u32 v22, v24, 7, v22
    v_lshrrev_b32 v24, 3, v21
    v_lshl_add_u32 v22, v24, 13, v22
    s_add_u32 s33, s{S_M0B}, 0x18000
    v_add_u32 v{V_XR}, s33, v22
    v_xor_b32 v{V_XR+1}, 32, v{V_XR}
    v_xor_b32 v{V_XR+2}, 64, v{V_XR}
    v_xor_b32 v{V_XR+3}, 96, v{V_XR}
    s_mov_b32 s33, s34
    """)
    for p in range(9):
        a(f"s_lshl_b32 s{S_XP+p}, s33, 7\ns_add_u32 s{S_XP+p}, s{S_XP+p}, s{S_XB}")
        a(f"s_add_u32 s33, s33, 1\ns_cmp_eq_u32 s33, 9\ns_cselect_b32 s33, 0, s33")
    a(f"s_cmp_ge_u32 s{S_SL}, 6\ns_cbranch_scc1 L1_QKV")

    ST = 9216
    a(f"""
    v_mul_u32_u24 v{V_DMA}, {ST}, v17
    v_add_u32 v{V_DMA}, v{V_DMA}, v20
    v_mov_b32 v{V_C1}, {hex(f2u(GC1))}
    s_mov_b32 s{S_C2}, {hex(f2u(GC2))}
    s_mul_i32 s35, s35, 6
    s_add_u32 s35, s35, s{S_SL}
    s_mul_i32 s{S_HOFF}, s{S_T}, {288*1024}
    s_mul_i32 s33, s35, {12*1024}
    s_add_u32 s{S_HOFF}, s{S_HOFF}, s33
    s_mul_i32 s35, s35, 384
    """)
    rows_setup(a, ST, 35)
    if FINE: stm.stamp(a, 1)
    a("s_waitcnt lgkmcnt(0)")
    srd(a, S_X, 48, 2048 * 1152)
    srd(a, S_W0, 52, 576 * ST)
    srd(a, S_W1, 54, 576 * ST)
    srd(a, S_WS, 56, WS_SIZE)
    ph = []
    for i in range(3):
        ph.append(dict(srd=S_W0, col=128 * i, swapped=True))
        ph.append(dict(srd=S_W1, col=128 * i, swapped=True))
    P = Prog(a, ph, True)
    side = {}; pre = {}
    spread(side, gelu_items(a, ACC[0]), P.g_end + 3, 143)
    for i in (1, 2):
        b = 144 * i
        pre[b] = fin_mul(a, 0); pre[b + 1] = fin_mul(a, 1)
        spread(side, fin_store(a), b + 3, b + 40)
        spread(side, gelu_items(a, ACC[0]), b + 72 + 3, b + 142)
    P.emit(side, pre, {})
    for f in fin_mul(a, 0) + fin_mul(a, 1) + fin_store(a): f()
    stm.end(a, S_WS, S_WAVE, 0)
    a("s_endpgm")

    a.label("L1_QKV")
    ST = 3456
    a(f"""
    v_mul_u32_u24 v{V_DMA}, {ST}, v17
    v_add_u32 v{V_DMA}, v{V_DMA}, v20
    s_lshl_b32 s35, s35, 1
    s_add_u32 s35, s35, s{S_SL}
    s_sub_u32 s{S_SL}, s35, 6
    s_lshl_b32 s32, s{S_SL}, 2
    s_mul_i32 s33, s{S_SL}, 3
    s_add_u32 s33, s33, 3
    s_cmp_le_u32 s{S_SL}, 3
    s_cselect_b32 s32, s32, s33         ; start phase
    s_lshl_b32 s{S_COL}, s32, 6
    s_lshl_b32 s35, s32, 7
    """)
    rows_setup(a, ST, 35)
    a(f"s_movk_i32 s{S_TMP+2}, 3641")
    a("s_waitcnt lgkmcnt(0)")
    srd(a, S_X, 48, 2048 * 1152)
    srd(a, S_W0, 50, 576 * ST)
    srd(a, S_WS, 56, WS_SIZE)
    a(f"s_cmp_ge_u32 s{S_SL}, 5\ns_cbranch_scc1 L1_V")
    a(f"""
    s_mov_b32 s{S_TMP+3}, {QK_HS}
    s_mul_i32 s{S_HOFF}, s{S_T}, 1536
    s_add_u32 s{S_HOFF}, s{S_HOFF}, {WS_Q}
    v_lshlrev_b32 v10, 2, v23
    v_lshlrev_b32 v0, 4, v21
    """)
    a.vm = []; a.lg = []
    P = Prog(a, [dict(srd=S_W0, col=128 * i, swapped=True) for i in range(4)], False)
    side = {}
    for i in range(1, 4): spread(side, qk_epi(a, ACC[(i - 1) % 2]), 72 * i + 3, 72 * i + 70)
    def exit3():
        a(f"s_cmp_ge_u32 s{S_SL}, 3\ns_cbranch_scc1 L1_QK3")
    P.emit(side, {}, {215: exit3})
    for f in qk_epi(a, ACC[1]): f()
    stm.end(a, S_WS, S_WAVE, 0)
    a("s_endpgm")
    a.label("L1_QK3")
    for f in qk_epi(a, ACC[0]): f()
    stm.end(a, S_WS, S_WAVE, 0)
    a("s_endpgm")
    a.label("L1_V")
    a(f"""
    s_mov_b32 s{S_TMP+3}, {64*1280}
    s_mul_i32 s{S_HOFF}, s{S_T}, 1280
    s_add_u32 s{S_HOFF}, s{S_HOFF}, {WS_V}
    v_mov_b32 v10, v21
    v_mul_u32_u24 v0, 320, v23
    """)
    a.vm = []; a.lg = []
    P = Prog(a, [dict(srd=S_W0, col=128 * i, swapped=False) for i in range(3)], False)
    side = {}
    for i in range(1, 3): spread(side, v_epi(a, ACC[(i - 1) % 2]), 72 * i + 3, 72 * i + 40)
    P.emit(side, {}, {})
    for f in v_epi(a, ACC[0]): f()
    a(f"s_cmp_lg_u32 s{S_SL}, 7\ns_cbranch_scc1 L1_END")
    srd(a, S_W1, 58, 1152)
    a(f"v_lshrrev_b32 v11, 9, v{V_L16}\nv_lshlrev_b32 v11, 4, v11")
    a.vm = []
    GB = [16 + 4 * i for i in range(8)] + [96 + 4 * i for i in range(4)]
    D = ACC[1]
    for rnd in range(3):
        for i in range(12):
            ks = rnd * 12 + i
            if i % 4 == 0: a(f"s_sub_u32 s{S_TMP}, s{S_XP + ks // 4}, s{S_XB}")
            a.vmem(f"buffer_load_dwordx4 v[{GB[i]}:{GB[i]+3}], v11, s[{S_W1}:{S_W1+3}], s{S_TMP} offen offset:{(ks%4)*32}", i)
        for i in range(12):
            ks = rnd * 12 + i
            a.wait_vm(i)
            c = "0" if ks == 0 else f"v[{D}:{D+15}]"
            a(f"v_mfma_f32_32x32x16_bf16 v[{D}:{D+15}], v[{GB[i]}:{GB[i]+3}], v[{VX+4*ks}:{VX+4*ks+3}], {c}")
    a(f"""
    v_mul_f32 v12, {hex(f2u(-math.log2(math.e)))}, v{D}
    v_exp_f32 v12, v12
    v_add_f32 v12, 1.0, v12
    v_rcp_f32 v12, v12
    v_lshlrev_b32 v13, 2, v10
    s_lshl_b32 s30, s{S_T}, 7
    s_add_u32 s30, s30, {WS_G}
    buffer_store_dword v12, v13, s[{S_WS}:{S_WS+3}], s30 offen
    """)
    a.label("L1_END")
    a("s_endpgm")
    n = a.fix()
    return a, n
if __name__ == "__main__":
    a, n = gen("l1_kernel"); print(n, len(a.ins))
    m = 0
    for x in a.ins:
        if x.kind == "mfma": m += 1
        if m > 160: break
        if x.kind == "vmem" or x.op in ("s_barrier",) or "vmcnt" in x.text or x.op == "ds_read_b128": print(m, x.text)
```

```python
from asmlib import *
from layout import *
import os
ABL2 = os.environ.get('ABL2', '')
import stamp as stm

NG = 256
NA = 512
LDS_L2 = 52 * 1024
S_WS = 4
S_WD = 8
S_WAVE = 20

def srd(a, d, src, nbytes):
    a(f"s_mov_b32 s{d}, s{src}\ns_mov_b32 s{d+1}, s{src+1}\ns_mov_b32 s{d+2}, {nbytes}\ns_mov_b32 s{d+3}, 0x00020000")

V_L16, V_KR, V_V = 1, 2, 3
V_M = 4
V_T = 8
QM = 12
QR = 28
OA = 44
SB = 96
PB = 128
KV = 136
S_KM, S_KE, S_V = 21, 22, 23
S_KM0, S_VE, S_V0 = 24, 25, 26
S_CNT, S_NMAX = 27, 28
S_VM = 30
S_H, S_QB = 32, 33

def oacc(i): return f"v[{OA+12*i}:{OA+12*i+15}]"
def kmain(b): return f"v[{KV+16*b}:{KV+16*b+3}]"
def krem(b): return f"v[{KV+16*b+4}:{KV+16*b+7}]"
def vfr(b, j): return f"v[{KV+16*b+8+4*j}:{KV+16*b+11+4*j}]"
def sbuf(s): return f"v[{SB+16*s}:{SB+16*s+15}]"

def load_k(a, b, jpos, tok):
    a.vmem(f"buffer_load_dwordx4 {kmain(b)}, v{V_L16}, s[{S_WS}:{S_WS+3}], s{S_KM} offen", tok)
    a.vmem(f"buffer_load_dword v{KV+16*b+4}, v{V_KR}, s[{S_WS}:{S_WS+3}], s{S_KM} offen offset:1024", tok)
    a(f"s_add_u32 s{S_KM}, s{S_KM}, 1536\ns_cmp_eq_u32 s{S_KM}, s{S_KE}\ns_cselect_b32 s{S_KM}, s{S_KM0}, s{S_KM}")
def load_v(a, b, tok):
    a(f"s_mov_b64 exec, s[{S_VM}:{S_VM+1}]")
    a.vmem(f"buffer_load_dwordx4 {vfr(b,0)}, v{V_V}, s[{S_WS}:{S_WS+3}], s{S_V} offen", tok)
    a.vmem(f"buffer_load_dwordx4 {vfr(b,1)}, v{V_V}, s[{S_WS}:{S_WS+3}], s{S_V} offen offset:640", tok)
    a(f"s_mov_b64 exec, -1")
    a(f"s_add_u32 s{S_V}, s{S_V}, 1280\ns_cmp_eq_u32 s{S_V}, s{S_VE}\ns_cselect_b32 s{S_V}, s{S_V0}, s{S_V}")

def qk1(a, s, b, i): a(f"v_mfma_f32_32x32x16_bf16 {sbuf(s)}, {kmain(b)}, v[{QM+4*i}:{QM+4*i+3}], 0")
def qk2(a, s, b, i): a(f"v_mfma_f32_32x32x16_bf16 {sbuf(s)}, {krem(b)}, v[{QR+4*i}:{QR+4*i+3}], {sbuf(s)}")
def pv(a, b, i, j): a(f"v_mfma_f32_32x32x16_bf16 {oacc(i)}, {vfr(b,j)}, v[{PB+4*j}:{PB+4*j+3}], {oacc(i)}")

def attn_body(a):
    if "a" in ABL2:
        sv = a.vmem; a.vmem = lambda text, tok=None: None
        a("s_waitcnt vmcnt(0)"); a.vm = []
        try: attn_body2(a)
        finally: a.vmem = sv
    else: attn_body2(a)
def attn_body2(a):
    for t in range(8):
        b, i, s = t // 4, t % 4, t % 2
        S = SB + 16 * s
        e = lambda k: a(f"v_exp_f32 v{S+k}, v{S+k}")
        c = lambda k: a(f"v_cvt_pk_bf16_f32 v{PB+k}, v{S+2*k}, v{S+2*k+1}")
        pb, pi = ((t - 1) % 8) // 4, (t - 1) % 4
        nb, ni = ((t + 1) % 8) // 4, (t + 1) % 4
        e(0); e(1)
        pv(a, pb, pi, 1)
        if i == 0: load_v(a, 1 - b, ("V", 1 - b))
        e(2); e(3); c(0); e(4)
        if ni == 0: a.wait_vm(("K", nb))
        qk1(a, 1 - s, nb, ni)
        e(5); c(1); e(6); e(7); c(2)
        qk2(a, 1 - s, nb, ni)
        if ni == 3: load_k(a, nb, None, ("K", nb))
        e(8); e(9); c(3); e(10); e(11); c(4)
        if i == 0: a.wait_vm(("V", b))
        pv(a, b, i, 0)
        e(12); e(13); c(5); e(14); e(15); c(6); c(7)

import os
ABL2 = os.environ.get("ABL2", "")
PFLAGS = os.environ.get("PFLAGS", "")
RAMP = os.environ.get("RAMP", "")
AFIRST = int(os.environ.get("AFIRST", 1))
AROT = int(os.environ.get("AROT", 1)); GROT = int(os.environ.get("GROT", 1))
PA1 = int(os.environ.get("PA1", 3)); PA2 = int(os.environ.get("PA2", 3)); PG = int(os.environ.get("PG", 0))
def max_tile(a, b):
    for i in range(4):
        qk1(a, i % 2, b, i); qk2(a, i % 2, b, i)
        if i > 0:
            S = SB + 16 * ((i - 1) % 2)
            for k in range(8): a(f"v_max3_f32 v{V_M+i-1}, v{S+2*k}, v{S+2*k+1}, v{V_M+i-1}")
    S = SB + 16
    for k in range(8): a(f"v_max3_f32 v{V_M+3}, v{S+2*k}, v{S+2*k+1}, v{V_M+3}")

def gen_attn(a):
    a.label("L2_ATT")
    a(f"""
    s_setprio 3
    s_sub_u32 s34, s2, {NG}
    s_and_b32 s35, s34, 7
    s_lshr_b32 s34, s34, 3            ; 0..63
    s_lshr_b32 s36, s34, 4
    s_lshl_b32 s35, s35, 2
    s_add_u32 s{S_H}, s35, s36        ; head
    s_and_b32 s{S_QB}, s34, 15
    v_lshlrev_b32 v{V_L16}, 4, v0
    v_and_b32 v8, 31, v0
    v_lshlrev_b32 v{V_KR}, 4, v8
    v_lshrrev_b32 v9, 5, v0
    v_mul_u32_u24 v10, 320, v9
    v_add_u32 v{V_V}, v10, v{V_KR}
    s_mov_b32 s{S_VM}, 0x3ffff
    s_mov_b32 s{S_VM+1}, 0x3ffff
    s_mul_i32 s34, s{S_H}, {QK_HS}
    s_mul_i32 s35, s{S_QB}, {4*1536}
    s_add_u32 s35, s35, s34
    s_add_u32 s35, s35, {WS_Q}
    s_add_u32 s37, s35, {2*1536}
    s_mul_i32 s36, s{S_WAVE}, {16*1536}
    s_add_u32 s{S_KM0}, s34, s36
    s_add_u32 s{S_KM0}, s{S_KM0}, {WS_K}
    s_lshl_b32 s34, s{S_H}, 6
    s_lshl_b32 s36, s{S_WAVE}, 4
    s_add_u32 s34, s34, s36
    s_mul_i32 s{S_V0}, s34, 1280
    s_add_u32 s{S_V0}, s{S_V0}, {WS_V}
    s_mov_b32 s{S_NMAX}, 1
    s_add_u32 s{S_KE}, s{S_KM0}, {16*1536}
    s_add_u32 s{S_VE}, s{S_V0}, {16*1280}
    s_mul_i32 s{S_KM}, s{S_QB}, {1536*AROT}
    s_add_u32 s{S_KM}, s{S_KM}, s{S_KM0}
    s_mul_i32 s{S_V}, s{S_QB}, {1280*AROT}
    s_add_u32 s{S_V}, s{S_V}, s{S_V0}
    v_cmp_eq_u32 vcc, 18, v8
    v_mov_b32 v10, 0x3f803f80
    v_cndmask_b32 v11, 0, v10, vcc
    """)
    for k in range(8): a(f"v_mov_b32 v{KV+8+k}, v11")
    for i in range(4): a(f"v_mov_b32 v{QR+4*i}, 0")
    a("s_waitcnt lgkmcnt(0)")
    srd(a, S_WS, 48, WS_SIZE)
    a.vm = []
    load_k(a, 0, None, ("K", 0))
    for i in range(4):
        so = 35 if i < 2 else 37
        a.vmem(f"buffer_load_dwordx4 v[{QM+4*i}:{QM+4*i+3}], v{V_L16}, s[{S_WS}:{S_WS+3}], s{so} offen offset:{1536*(i%2)}", "Q")
    a("s_mov_b32 exec_hi, 0")
    for i in range(4):
        so = 35 if i < 2 else 37
        a.vmem(f"buffer_load_dword v{QR+4*i}, v{V_KR}, s[{S_WS}:{S_WS+3}], s{so} offen offset:{1536*(i%2)+1024}", "Q")
    load_v(a, 0, ("V", 0))
    load_k(a, 1, None, ("K", 1))
    if PA1 == PA2 == 3: pass
    elif PA1 == PA2: a(f"s_setprio {PA1}")
    else:
        a(f"s_setprio {PA1}\ns_cmp_lt_u32 s2, {NG+256}\ns_cbranch_scc1 L2_PR\ns_setprio {PA2}")
        a.label("L2_PR")
    for b in range(2):
        a(f"v_mov_b32 v{KV+16*b+5}, v10\nv_mov_b32 v{KV+16*b+6}, 0\nv_mov_b32 v{KV+16*b+7}, 0")
    for k in range(8): a(f"v_mov_b32 v{KV+16+8+k}, v11")
    for i in range(4):
        a(f"v_mov_b32 v{QR+4*i+1}, 0\nv_mov_b32 v{QR+4*i+2}, 0\nv_mov_b32 v{QR+4*i+3}, 0\nv_mov_b32 v{V_M+i}, 0xff800000")
    stm.stamp(a, 1)
    a.wait_vm("Q")
    stm.stamp(a, 4)
    max_tile(a, 0)
    a.label("L2_SETM")
    for k in range(4, 8): a(f"v_mov_b32 v{PB+k}, 0")
    a("v_cmp_gt_u32 vcc, 32, v0")
    for i in range(4):
        m = V_M + i
        a(f"""
        v_mov_b32 v8, v{m}
        v_mov_b32 v9, v{m}
        v_mfma_f32_32x32x16_bf16 {oacc(i)}, v[{PB+4}:{PB+7}], v[{PB+4}:{PB+7}], 0
        v_permlane32_swap_b32 v8, v9
        v_max_f32 v{m}, v8, v9
        v_sub_f32 v8, 0, v{m}                 ; -m
        v_and_b32 v9, 0xffff0000, v8          ; hi
        v_sub_f32 v8, v8, v9                  ; r1
        v_and_b32 v10, 0xffff0000, v8         ; mid
        v_sub_f32 v8, v8, v10
        v_lshrrev_b32 v9, 16, v9
        v_or_b32 v9, v9, v10                  ; [mid:hi]
        v_lshrrev_b32 v8, 16, v8              ; [0:lo]
        v_cndmask_b32 v{QR+4*i+1}, v8, v9, vcc
        """)
        if i == 1:
            qk1(a, 0, 0, 0); qk2(a, 0, 0, 0)
    a(f"s_mov_b32 s{S_CNT}, 8")
    stm.stamp(a, 2)
    a.label("L2_AL")
    vm_entry = list(a.vm)
    n0 = len(a.ins)
    attn_body(a)
    txt1 = [x.text for x in a.ins[n0:]]
    b2 = Asm(); b2.vm = list(a.vm); attn_body(b2)
    txt2 = [x.text for x in b2.ins]
    if txt1 != txt2:
        for x, y in zip(txt1, txt2):
            if x != y: print("ATT steady mismatch:", x, "|", y)
        raise SystemExit(1)
    a(f"s_sub_u32 s{S_CNT}, s{S_CNT}, 1")
    for i, tok in enumerate(RAMP.split()):
        cnt, pr = tok.split(":")
        a(f"s_cmp_lg_u32 s{S_CNT}, {cnt}\ns_cbranch_scc1 L2_RP{i}\ns_setprio {pr}")
        a.label(f"L2_RP{i}")
    a(f"s_cmp_lg_u32 s{S_CNT}, 0\ns_cbranch_scc1 L2_AL")
    a("s_setprio 3")
    pv(a, 1, 3, 1)
    stm.stamp(a, 3)
    a("v_mov_b32 v8, 0\nv_mov_b32 v9, 0")
    a(f"""
    s_mul_i32 s38, s{S_WAVE}, {4*3328}
    v_add_u32 v{SB}, s38, v{V_L16}
    v_lshlrev_b32 v{SB+1}, 2, v0
    v_add_u32 v{SB+1}, s38, v{SB+1}
    """)
    for i in range(4):
        for k in range(0, 12, 2):
            a(f"v_pk_fma_f32 v[8:9], v[{OA+12*i+k}:{OA+12*i+k+1}], 0, v[8:9]")
    a(f"""
    v_add_f32 v8, v8, v9
    v_min_f32 v9, v{OA+10}, v{OA+22}
    v_min3_f32 v9, v{OA+34}, v{OA+46}, v9
    v_max_f32 v10, v{OA+10}, v{OA+22}
    v_max3_f32 v10, v{OA+34}, v{OA+46}, v10
    v_cmp_eq_f32 s[34:35], 0, v8
    v_cmp_lt_f32 vcc, {hex(f2u(2.0**-30))}, v9
    s_or_b32 vcc_hi, vcc_hi, -1
    s_and_b64 s[34:35], s[34:35], vcc
    v_cmp_gt_f32 vcc, {hex(f2u(2.0**30))}, v10
    s_and_b64 s[34:35], s[34:35], vcc
    s_cmp_eq_u64 s[34:35], -1
    s_cbranch_scc1 L2_AOK
    s_cmp_eq_u32 s{S_NMAX}, 16
    s_cbranch_scc1 L2_AOK
    """)
    a(f"s_mov_b32 s{S_NMAX}, 16\ns_mov_b32 s{S_KM}, s{S_KM0}\ns_mov_b32 s{S_CNT}, 16\ns_waitcnt vmcnt(0)")
    for i in range(4):
        a(f"v_mov_b32 v{QR+4*i+1}, 0\nv_mov_b32 v{V_M+i}, 0xff800000")
    a.label("L2_MAXL")
    a.vm = []
    load_k(a, 0, None, "k")
    a.wait_vm("k")
    max_tile(a, 0)
    a(f"s_sub_u32 s{S_CNT}, s{S_CNT}, 1\ns_cmp_lg_u32 s{S_CNT}, 0\ns_cbranch_scc1 L2_MAXL")
    a(f"s_mov_b32 s{S_KM}, s{S_KM0}\ns_mov_b32 s{S_V}, s{S_V0}")
    load_k(a, 0, None, ("K", 0))
    load_v(a, 0, ("V", 0))
    load_k(a, 1, None, ("K", 1))
    a("s_waitcnt vmcnt(0)\ns_branch L2_SETM")
    a.label("L2_AOK")
    for i in range(4):
        for ch in range(3):
            a(f"ds_write_b128 v{SB}, v[{OA+12*i+4*ch}:{OA+12*i+4*ch+3}] offset:{i*3328+ch*1024}")
        a(f"ds_write_b32 v{SB+1}, v{V_M+i} offset:{i*3328+3072}")
    a(f"""
    s_mul_i32 s34, s{S_WAVE}, 3328
    v_add_u32 v8, s34, v{V_L16}
    v_lshlrev_b32 v9, 2, v0
    v_add_u32 v9, s34, v9
    v_add_u32 v10, s34, v{V_KR}
    s_lshl_b32 s34, s{S_QB}, 2
    s_add_u32 s34, s34, s{S_WAVE}
    s_mul_i32 s34, s34, {36*1024}
    s_add_u32 s34, s34, {WS_O}
    s_lshl_b32 s35, s{S_H}, 10
    s_add_u32 s35, s35, s34
    s_lshr_b32 s36, s{S_H}, 2
    s_lshl_b32 s36, s36, 9
    s_add_u32 s34, s34, s36
    s_and_b32 s36, s{S_H}, 3
    s_lshl_b32 s36, s36, 2
    s_add_u32 s34, s34, s36
    s_add_u32 s34, s34, {32*1024}
    s_waitcnt vmcnt(0) lgkmcnt(0)
    s_barrier
    """)
    R0 = 12
    for w in range(4):
        a(f"ds_read_b32 v{R0+16*w+12}, v9 offset:{w*4*3328+3072}")
        a(f"ds_read_b32 v{R0+16*w+13}, v10 offset:{w*4*3328+2048+8}")
    for w in range(4):
        for ch in range(2):
            a(f"ds_read_b128 v[{R0+16*w+4*ch}:{R0+16*w+4*ch+3}], v8 offset:{w*4*3328+ch*1024}")
        a(f"ds_read_b64 v[{R0+16*w+8}:{R0+16*w+9}], v8 offset:{w*4*3328+2048}")
    a("s_waitcnt lgkmcnt(12)")
    a(f"v_max_f32 v8, v{R0+12}, v{R0+28}\nv_max3_f32 v8, v{R0+44}, v{R0+60}, v8")
    for w in range(4):
        a(f"v_sub_f32 v{R0+16*w+12}, v{R0+16*w+12}, v8")
    for w in range(4):
        a(f"v_exp_f32 v{R0+16*w+12}, v{R0+16*w+12}")
    a(f"v_mul_f32 v9, v{R0+13}, v{R0+12}")
    for w in range(1, 4):
        a(f"v_fma_f32 v9, v{R0+16*w+13}, v{R0+16*w+12}, v9")
    a("v_rcp_f32 v9, v9")
    for w in range(4):
        a(f"v_mul_f32 v{R0+16*w+12}, v{R0+16*w+12}, v9")
    a("s_waitcnt lgkmcnt(0)")
    for w in range(4):
        for k in range(10):
            if w == 0: a(f"v_mul_f32 v{R0+k}, v{R0+k}, v{R0+12}")
            else: a(f"v_fma_f32 v{R0+k}, v{R0+16*w+k}, v{R0+16*w+12}, v{R0+k}")
    for k in range(5):
        a(f"v_cvt_pk_bf16_f32 v{R0+16+k}, v{R0+2*k}, v{R0+2*k+1}")
    a(f"""
    buffer_store_dwordx4 v[{R0+16}:{R0+19}], v{V_L16}, s[{S_WS}:{S_WS+3}], s35 offen
    s_mov_b32 exec_hi, 0
    buffer_store_dword v{R0+20}, v{V_L16}, s[{S_WS}:{S_WS+3}], s34 offen
    """)
    stm.end(a, S_WS, S_WAVE, 1)
    a("s_endpgm")

G_ACC = 72
G_AR = 40
G_B = 24
G_NB, G_LA = 8, int(os.environ.get("GLA", 7))
G_RB0, G_RB1, G_DMA = 2, 3, 4
GS_DO, GS_BO, GS_M0, GS_CNT, GS_PO = 21, 22, 23, 24, 25
GS_D0, GS_DE, GS_B0, GS_BE = 26, 27, 28, 29
GSTG = 12288; GR = 4

def g_rd(a, m):
    mm = m % 48
    st, r = mm // 12, mm % 12
    ksl, nt = r // 6, r % 6
    buf = G_AR + 4 * (m % G_NB)
    va = G_RB0 if nt % 2 == 0 else G_RB1
    off = st * GSTG + (nt // 2) * 4096 + ksl * 2048
    a.lds(f"ds_read_b64_tr_b16 v[{buf}:{buf+1}], v{va} offset:{off}", ("A", m % G_NB))
    a.lds(f"ds_read_b64_tr_b16 v[{buf+2}:{buf+3}], v{va} offset:{off+1024}", ("A", m % G_NB))
def g_dma(a, slot, tok):
    items = []
    for c in range(3):
        def f(c=c):
            a(f"s_add_u32 m0, s{GS_M0}, {slot*GSTG + c*4096 - c*128}")
            a.vmem(f"buffer_load_dwordx4 v{G_DMA}, s[{S_WD}:{S_WD+3}], s{GS_DO} offen offset:{c*128} lds", tok)
            if c == 2: a(f"s_add_u32 s{GS_DO}, s{GS_DO}, {32*1152}\ns_cmp_eq_u32 s{GS_DO}, s{GS_DE}\ns_cselect_b32 s{GS_DO}, s{GS_D0}, s{GS_DO}")
        items.append(f)
    return items
def g_bload(a, k):
    b = G_B + 4 * (k % 4)
    a.vmem(f"buffer_load_dwordx4 v[{b}:{b+3}], v{V_L16}, s[{S_WS}:{S_WS+3}], s{GS_BO} offen", ("B", k % 4))
    a(f"s_add_u32 s{GS_BO}, s{GS_BO}, 1024\ns_cmp_eq_u32 s{GS_BO}, s{GS_BE}\ns_cselect_b32 s{GS_BO}, s{GS_B0}, s{GS_BO}")
def g_body(a):
    if "g" in ABL2:
        sv = a.vmem; a.vmem = lambda text, tok=None: None
        a("s_waitcnt vmcnt(0)"); a.vm = []
        try: g_body2(a)
        finally: a.vmem = sv
    else: g_body2(a)
def g_body2(a):
    pend = []
    for m in range(48):
        st, r = m // 12, m % 12
        ksl, nt = r // 6, r % 6
        k = st * 2 + ksl
        a.wait_lg(("A", m % G_NB))
        if nt == 0: a.wait_vm(("B", k % 4))
        buf = G_AR + 4 * (m % G_NB); b = G_B + 4 * (k % 4); d = G_ACC + 16 * nt
        a(f"v_mfma_f32_32x32x16_bf16 v[{d}:{d+15}], v[{buf}:{buf+3}], v[{b}:{b+3}], v[{d}:{d+15}]")
        nm = m + G_LA
        if nm % 12 == 0:
            ns = (nm // 12) % 4
            a.wait_vm(("W", ns))
            a("s_barrier")
            pend += g_dma(a, (ns + 2) % 4, ("W", (ns + 2) % 4))
        g_rd(a, nm)
        if pend: pend.pop(0)()
        if nt == 5: g_bload(a, k)
        if r == 11:
            a(f"s_sub_u32 s{GS_CNT}, s{GS_CNT}, 1\ns_cmp_eq_u32 s{GS_CNT}, 0\ns_cbranch_scc1 L2_GE")
    assert not pend

def gen_gemm2(a):
    a(f"""
    s_setprio 3
    s_and_b32 s34, s2, 7
    s_lshr_b32 s35, s2, 3              ; 0..29
    s_mul_i32 s36, s35, 43
    s_lshr_b32 s36, s36, 7             ; /3 -> 0..9
    s_mul_i32 s37, s36, 3
    s_sub_u32 s37, s35, s37            ; nb 0..2
    s_mul_i32 s40, s36, 3
    s_mul_i32 s41, s37, 10
    s_add_u32 s40, s40, s41            ; rotation (0..47)
    s_cmp_ge_u32 s40, 28
    s_cselect_b32 s41, 28, 0
    s_sub_u32 s40, s40, s41
    s_mul_i32 s40, s40, {GROT}
    s_mul_i32 s34, s34, 10
    s_add_u32 s34, s34, s36            ; combo 0..79
    s_lshr_b32 s35, s34, 4
    s_and_b32 s34, s34, 15             ; mt
    s_lshl_b32 s34, s34, 2
    s_add_u32 s34, s34, s{S_WAVE}      ; T
    s_mul_i32 s36, s35, 29
    s_cmp_eq_u32 s35, 4
    s_cselect_b32 s{GS_CNT}, 28, 29
    s_mul_i32 s{GS_BO}, s34, 288
    s_lshl_b32 s38, s36, 1
    s_add_u32 s{GS_BO}, s{GS_BO}, s38
    s_lshl_b32 s{GS_BO}, s{GS_BO}, 10
    s_lshl_b32 s38, s36, 2
    s_add_u32 s38, s38, s{S_WAVE}
    s_mul_i32 s{GS_DO}, s38, {8*1152}
    s_mul_i32 s38, s37, 384
    s_add_u32 s{GS_DO}, s{GS_DO}, s38
    s_lshl_b32 s{GS_M0}, s{S_WAVE}, 10
    s_mov_b32 s{GS_D0}, s{GS_DO}
    s_mov_b32 s{GS_B0}, s{GS_BO}
    s_mul_i32 s38, s{GS_CNT}, {32*1152}
    s_add_u32 s{GS_DE}, s{GS_D0}, s38
    s_lshl_b32 s38, s{GS_CNT}, 11
    s_add_u32 s{GS_BE}, s{GS_B0}, s38
    s_mul_i32 s38, s40, {32*1152}
    s_add_u32 s{GS_DO}, s{GS_DO}, s38
    s_lshl_b32 s38, s40, 11
    s_add_u32 s{GS_BO}, s{GS_BO}, s38
    s_lshl_b32 s38, s35, 6
    s_add_u32 s38, s38, s34
    s_mul_i32 s38, s38, 18
    s_mul_i32 s39, s37, 6
    s_add_u32 s38, s38, s39
    s_lshl_b32 s{GS_PO}, s38, 11
    s_add_u32 s{GS_PO}, s{GS_PO}, {WS_P}
    v_lshlrev_b32 v{V_L16}, 4, v0
    v_lshrrev_b32 v9, 3, v0
    v_and_b32 v10, 7, v0
    v_lshlrev_b32 v12, 1, v9
    v_and_b32 v12, 4, v12
    v_xor_b32 v12, v12, v10
    v_lshlrev_b32 v12, 4, v12
    v_mul_u32_u24 v{G_DMA}, 1152, v9
    v_add_u32 v{G_DMA}, v{G_DMA}, v12
    v_and_b32 v13, 15, v0
    v_lshrrev_b32 v14, 2, v13       ; r
    v_and_b32 v13, 3, v13           ; c
    v_lshrrev_b32 v15, 5, v0        ; hf
    v_lshl_add_u32 v15, v15, 2, v14 ; 4hf + r
    v_lshlrev_b32 v15, 7, v15
    v_lshl_add_u32 v15, v13, 3, v15
    v_and_b32 v13, 16, v0
    v_lshl_add_u32 v15, v13, 1, v15
    v_and_b32 v14, 2, v14
    v_lshl_add_u32 v{G_RB0}, v14, 5, v15
    v_xor_b32 v{G_RB1}, 64, v{G_RB0}
    """)
    a("s_waitcnt lgkmcnt(0)")
    srd(a, S_WS, 48, WS_SIZE)
    srd(a, S_WD, 50, 4608 * 1152)
    a.vm = []; a.lg = []
    pos = (12 - G_LA % 12) % 12
    ev = sorted([(pos + c, 0, c) for c in range(3)] + [(5, 1, 0), (11, 1, 1)])
    assert pos + 2 <= 11
    for f in g_dma(a, 0, ("W", 0)): f()
    for st in (1, 2):
        items = g_dma(a, st, ("W", st))
        for (_, kind, c) in ev:
            if kind == 0: items[c]()
            else: g_bload(a, 2 * st - 2 + c)
    for k in range(4): a(f"v_mov_b32 v{8+k}, 0")
    for k in range(6): a(f"v_mfma_f32_32x32x16_bf16 v[{G_ACC+16*k}:{G_ACC+16*k+15}], v[8:11], v[8:11], 0")
    a.wait_vm(("W", 0))
    a("s_barrier")
    for m in range(G_LA): g_rd(a, m)
    a(f"s_setprio {PG}")
    stm.stamp(a, 2)
    a.label("L2_GL")
    n0 = len(a.ins)
    g_body(a)
    txt1 = [x.text for x in a.ins[n0:]]
    b2 = Asm(); b2.vm = list(a.vm); b2.lg = list(a.lg); g_body(b2)
    txt2 = [x.text for x in b2.ins]
    if txt1 != txt2:
        for x, y in zip(txt1, txt2):
            if x != y: print("G steady mismatch:", x, "|", y)
        raise SystemExit(1)
    a("s_branch L2_GL")
    a.label("L2_GE")
    stm.stamp(a, 3)
    a("s_setprio 3")
    for nt in range(6):
        d = G_ACC + 16 * nt
        for k in range(8): a(f"v_cvt_pk_bf16_f32 v{d+k}, v{d+2*k}, v{d+2*k+1}")
        for ch in range(2):
            a(f"buffer_store_dwordx4 v[{d+4*ch}:{d+4*ch+3}], v{V_L16}, s[{S_WS}:{S_WS+3}], s{GS_PO} offen offset:{(nt%2)*2048+ch*1024}{PFLAGS}")
        if nt % 2: a(f"s_add_u32 s{GS_PO}, s{GS_PO}, 4096")
    stm.end(a, S_WS, S_WAVE, 1)
    a("s_endpgm")

def gen_wo(a):
    a.label("L2_WO")
    a("s_waitcnt lgkmcnt(0)")
    srd(a, S_WS, 48, WS_SIZE)
    srd(a, S_WD, 52, 576 * 1152)
    a(f"""
    s_sub_u32 s34, s2, 240
    s_mul_i32 s35, s34, {36*1152}
    s_lshl_b32 s36, s{S_WAVE}, 10
    s_add_u32 s35, s35, s36
    v_lshlrev_b32 v{V_L16}, 4, v0
    """)
    for i in range(11):
        a(f"s_add_u32 m0, s36, {i*4096}")
        a(f"buffer_load_dwordx4 v{V_L16}, s[{S_WD}:{S_WD+3}], s35 offen lds")
        a(f"s_add_u32 s35, s35, 4096")
    a(f"""
    v_and_b32 v13, 15, v0
    v_lshrrev_b32 v14, 2, v13       ; r
    v_and_b32 v13, 3, v13           ; c
    v_lshrrev_b32 v15, 5, v0        ; hf
    v_lshl_add_u32 v16, v15, 2, v14 ; 4hf + r
    v_mul_u32_u24 v16, 1152, v16
    v_lshlrev_b32 v13, 3, v13
    v_and_b32 v17, 16, v0
    v_lshl_add_u32 v13, v17, 1, v13
    v_add_u32 v16, v16, v13
    v_lshrrev_b32 v17, 1, v14
    v_mul_u32_u24 v17, 18, v17
    v_and_b32 v18, 1, v14
    v_add3_u32 v17, v17, v18, 16
    v_mul_u32_u24 v17, 1152, v17
    v_add_u32 v17, v17, v13
    s_lshl_b32 s37, s{S_WAVE}, 6
    v_add_u32 v16, s37, v16
    v_add_u32 v17, s37, v17
    s_mul_i32 s38, s{S_WAVE}, {36*1024}
    s_add_u32 s38, s38, {WS_WO}
    s_lshl_b32 s39, s34, 11
    s_add_u32 s39, s39, s38
    s_lshr_b32 s40, s34, 1           ; h>>2
    s_lshl_b32 s40, s40, 9
    s_add_u32 s40, s40, s38
    s_and_b32 s41, s34, 1
    s_lshl_b32 s41, s41, 3
    s_add_u32 s40, s40, s41
    s_add_u32 s40, s40, {32*1024}
    v_and_b32 v18, 31, v0
    v_lshlrev_b32 v18, 4, v18
    s_waitcnt vmcnt(0)
    s_barrier
    """)
    for it in range(5):
        if it == 4:
            a(f"s_cmp_ge_u32 s{S_WAVE}, 2\ns_cbranch_scc1 L2_END")
        for hh in range(2):
            a(f"ds_read_b64_tr_b16 v[{20+4*hh}:{21+4*hh}], v16 offset:{it*256 + hh*18*1152}")
            a(f"ds_read_b64_tr_b16 v[{22+4*hh}:{23+4*hh}], v16 offset:{it*256 + hh*18*1152 + 8*1152}")
        a(f"ds_read_b64_tr_b16 v[28:29], v17 offset:{it*256}")
        a("s_waitcnt lgkmcnt(0)")
        a(f"buffer_store_dwordx4 v[20:23], v{V_L16}, s[{S_WS}:{S_WS+3}], s39 offen")
        a(f"buffer_store_dwordx4 v[24:27], v{V_L16}, s[{S_WS}:{S_WS+3}], s39 offen offset:1024")
        a(f"buffer_store_dwordx2 v[28:29], v18, s[{S_WS}:{S_WS+3}], s40 offen")
        a(f"s_add_u32 s39, s39, {4*36*1024}\ns_add_u32 s40, s40, {4*36*1024}")
        a("s_waitcnt vmcnt(0)")
    a("s_endpgm")

def gen():
    a = Asm()
    a(f"s_cmp_ge_u32 s2, {NG+NA}\ns_cbranch_scc1 L2_END")
    if AFIRST:
        a(f"s_add_u32 s2, s2, {NG}\ns_cmp_ge_u32 s2, {NG+NA}\ns_cselect_b32 s3, {NG+NA}, 0\ns_sub_u32 s2, s2, s3")
    stm.begin(a)
    a("s_load_dwordx2 s[48:49], s[0:1], 80")
    a("s_load_dwordx2 s[50:51], s[0:1], 48")
    a("s_load_dwordx2 s[52:53], s[0:1], 16")
    a(f"v_lshrrev_b32 v8, 6, v0\nv_and_b32 v0, 63, v0\nv_readfirstlane_b32 s{S_WAVE}, v8")
    a(f"s_cmp_ge_u32 s2, {NG}\ns_cbranch_scc1 L2_ATT")
    a(f"s_cmp_ge_u32 s2, 240\ns_cbranch_scc1 L2_WO")
    gen_gemm2(a)
    gen_wo(a)
    gen_attn(a)
    a.label("L2_END")
    a("s_endpgm")
    n = a.fix()
    return a, n
if __name__ == "__main__":
    a, n = gen()
    print("nops", n, "instrs", len(a.ins))
```

```python
from asmlib import *
from layout import *
LDS_L3 = 72 * 1024 + 6 * 4096
S_WS, S_OUT = 4, 8
S_WAVE = 20
def srd(a, d, src, nbytes):
    a(f"s_mov_b32 s{d}, s{src}\ns_mov_b32 s{d+1}, s{src+1}\ns_mov_b32 s{d+2}, {nbytes}\ns_mov_b32 s{d+3}, 0x00020000")
AF = 16
PF = 88
PR = PF + 16
ACC = PR + 8 * NSPLIT
BB = ACC + 32
NV3 = BB + 32
def gen():
    a = Asm()
    a("s_cmp_ge_u32 s2, 192\ns_cbranch_scc1 L3_END")
    a("s_load_dwordx2 s[48:49], s[0:1], 80")
    a("s_load_dwordx2 s[50:51], s[0:1], 64")
    a(f"""
    v_lshrrev_b32 v8, 6, v0
    v_and_b32 v0, 63, v0
    v_readfirstlane_b32 s{S_WAVE}, v8
    v_lshlrev_b32 v1, 4, v0
    s_and_b32 s21, s2, 7
    s_lshr_b32 s22, s2, 3             ; 0..23
    s_mul_i32 s23, s22, 43
    s_lshr_b32 s23, s23, 8            ; /6
    s_mul_i32 s24, s23, 6
    s_sub_u32 s24, s22, s24           ; nrange 0..5
    s_lshl_b32 s21, s21, 2
    s_add_u32 s21, s21, s23           ; Tpair 0..31
    s_cmp_ge_u32 s{S_WAVE}, 3
    s_cselect_b32 s25, 1, 0           ; kh
    s_mul_i32 s26, s25, 3
    s_sub_u32 s26, s{S_WAVE}, s26
    s_mul_i32 s27, s24, 3
    s_add_u32 s27, s27, s26           ; ntile 0..17
    s_lshl_b32 s28, s21, 1
    s_add_u32 s28, s28, s25           ; final T
    s_mul_i32 s29, s21, {72*1024}
    s_mul_i32 s30, s{S_WAVE}, {12*1024}
    s_add_u32 s29, s29, s30
    s_add_u32 s29, s29, {WS_O}
    s_mul_i32 s31, s27, 36
    s_mul_i32 s32, s25, 18
    s_add_u32 s31, s31, s32
    s_lshl_b32 s31, s31, 10
    s_add_u32 s31, s31, {WS_WO}
    s_mul_i32 s33, s28, 18
    s_add_u32 s33, s33, s27
    s_lshl_b32 s33, s33, 11
    s_add_u32 s33, s33, {WS_P}
    s_lshl_b32 s34, s28, 7
    s_add_u32 s34, s34, {WS_G}
    v_and_b32 v2, 31, v0
    v_lshlrev_b32 v3, 2, v2
    s_waitcnt lgkmcnt(0)
    """)
    srd(a, S_WS, 48, WS_SIZE)
    srd(a, S_OUT, 50, 2048 * 1152)
    for i in range(3):
        a(f"s_add_u32 m0, s30, {i*4096}")
        for j in range(4):
            a.vmem(f"buffer_load_dwordx4 v1, s[{S_WS}:{S_WS+3}], s29 offen offset:{j*1024} lds", "B")
        a("s_add_u32 s29, s29, 4096")
    for k in range(18):
        a.vmem(f"buffer_load_dwordx4 v[{AF+4*k}:{AF+4*k+3}], v1, s[{S_WS}:{S_WS+3}], s31 offen offset:{(k%4)*1024}", ("A", k))
        if k % 4 == 3: a("s_add_u32 s31, s31, 4096")
    a.vmem(f"buffer_load_dword v4, v3, s[{S_WS}:{S_WS+3}], s34 offen", "g")
    for s in range(NSPLIT):
        for ch in range(2):
            a.vmem(f"buffer_load_dwordx4 v[{PR+8*s+4*ch}:{PR+8*s+4*ch+3}], v1, s[{S_WS}:{S_WS+3}], s33 offen offset:{ch*1024}", ("P", s))
        a(f"s_add_u32 s33, s33, {64*18*2048}")
    a(f"s_mul_i32 s35, s25, {18*1024}\nv_add_u32 v5, s35, v1")
    a.wait_vm("B")
    a("s_barrier")
    def brd(m):
        k, t = m // 2, m % 2
        b = BB + 4 * (m % 8)
        a.lds(f"ds_read_b128 v[{b}:{b+3}], v5 offset:{t*36*1024 + k*1024}", ("b", m % 8))
    for m in range(7): brd(m)
    for m in range(36):
        k, t = m // 2, m % 2
        a.wait_lg(("b", m % 8))
        if t == 0: a.wait_vm(("A", k))
        b = BB + 4 * (m % 8); d = ACC + 16 * t
        c = "0" if k == 0 else f"v[{d}:{d+15}]"
        a(f"v_mfma_f32_32x32x16_bf16 v[{d}:{d+15}], v[{AF+4*k}:{AF+4*k+3}], v[{b}:{b+3}], {c}")
        if m + 7 < 36: brd(m + 7)
    for s in range(NSPLIT):
        a.wait_vm(("P", s))
        for k in range(8):
            r = PR + 8 * s + k
            if s == 0:
                a(f"v_lshlrev_b32 v{PF+2*k}, 16, v{r}\nv_and_b32 v{PF+2*k+1}, 0xffff0000, v{r}")
            else:
                a(f"v_lshlrev_b32 v8, 16, v{r}\nv_and_b32 v{r}, 0xffff0000, v{r}\nv_add_f32 v{PF+2*k}, v{PF+2*k}, v8\nv_add_f32 v{PF+2*k+1}, v{PF+2*k+1}, v{r}")
    a(f"""
    s_lshl_b32 s35, s{S_WAVE}, 12
    s_add_u32 s35, s35, {72*1024}
    v_add_u32 v6, s35, v1
    s_mov_b32 s37, {-3*4096 & 0xffffffff}
    s_cmp_eq_u32 s25, 0
    s_cselect_b32 s36, {3*4096}, s37
    v_add_u32 v7, s36, v6
    s_cbranch_scc1 L3_K0
    """)
    for ch in range(4): a(f"ds_write_b128 v6, v[{ACC+4*ch}:{ACC+4*ch+3}] offset:{ch*1024}")
    for r in range(16): a(f"v_mov_b32 v{ACC+r}, v{ACC+16+r}")
    a("s_branch L3_X")
    a.label("L3_K0")
    for ch in range(4): a(f"ds_write_b128 v6, v[{ACC+16+4*ch}:{ACC+16+4*ch+3}] offset:{ch*1024}")
    a.label("L3_X")
    a("s_waitcnt lgkmcnt(0)\ns_barrier")
    for ch in range(4): a(f"ds_read_b128 v[{BB+4*ch}:{BB+4*ch+3}], v7 offset:{ch*1024}")
    a("v_sub_f32 v8, 1.0, v4")
    for r in range(16): a(f"v_mul_f32 v{PF+r}, v{PF+r}, v8")
    a(f"""
    v_mul_u32_u24 v9, 1152, v2
    v_lshrrev_b32 v10, 5, v0
    v_lshl_add_u32 v9, v10, 4, v9
    s_mul_i32 s35, s28, {32*1152}
    s_lshl_b32 s36, s27, 6
    s_add_u32 s35, s35, s36
    s_waitcnt lgkmcnt(0)
    """)
    for r in range(16): a(f"v_add_f32 v{ACC+r}, v{ACC+r}, v{BB+r}")
    for r in range(16): a(f"v_fma_f32 v{ACC+r}, v{ACC+r}, v4, v{PF+r}")
    for k in range(8): a(f"v_cvt_pk_bf16_f32 v{AF+k}, v{ACC+2*k}, v{ACC+2*k+1}")
    for ap in range(2):
        a(f"v_permlane32_swap_b32 v{AF+4*ap}, v{AF+4*ap+2}")
        a(f"v_permlane32_swap_b32 v{AF+4*ap+1}, v{AF+4*ap+3}")
    for ap in range(2):
        a(f"buffer_store_dwordx4 v[{AF+4*ap}:{AF+4*ap+3}], v9, s[{S_OUT}:{S_OUT+3}], s35 offen offset:{ap*32}")
    a.label("L3_END")
    a("s_endpgm")
    n = a.fix()
    return a, n
```

```python
WS_H  = 0
QK_HS = 64 * 1536
WS_Q  = 18874368
WS_K  = WS_Q + 32 * QK_HS
WS_V  = WS_K + 32 * QK_HS
WS_O  = WS_V + 32*64*1280
WS_WO = WS_O + 64*36*1024
WS_G  = WS_WO + 18*36*1024
WS_P  = WS_G + 8192
NSPLIT = 5
WS_END = WS_P + NSPLIT*64*18*4096
WS_SIZE = 268435456
import math
QSCALE = (18 ** -0.5) * math.log2(math.e)
GC1 = -2.0 * math.sqrt(2.0 / math.pi) * math.log2(math.e)
GC2 = GC1 * 0.044715
import struct
def f2u(x): return struct.unpack("<I", struct.pack("<f", x))[0]
```

```python
STAMP_OFF = 200*1024*1024
ON = False
import os
RT = bool(os.environ.get('RT'))
def begin(a):
    if not ON: return
    a("s_memtime s[60:61]\ns_memrealtime s[78:79]")
    for i in range(1, 9): a(f"s_mov_b32 s{60+2*i}, 0")
    a("s_getreg_b32 s82, hwreg(HW_REG_HW_ID)\ns_getreg_b32 s84, hwreg(HW_REG_XCC_ID)")
def stamp(a, i):
    if not ON: return
    a(f"s_memrealtime s[{60+2*i}:{61+2*i}]" if RT else f"s_memtime s[{60+2*i}:{61+2*i}]")
def end(a, s_ws, s_wave, region=0):
    if not ON: return
    a("s_mov_b64 exec, -1")
    a("s_waitcnt vmcnt(0) lgkmcnt(0)")
    a("s_memtime s[76:77]\ns_memrealtime s[80:81]\ns_waitcnt lgkmcnt(0)")
    a(f"s_lshl_b32 s86, s2, 4\ns_add_u32 s86, s86, s{s_wave}\ns_lshl_b32 s86, s86, 6\ns_add_u32 s86, s86, {STAMP_OFF + region*(1<<20)}")
    a("v_mov_b32 v9, 0")
    for i in range(13):
        a(f"v_mov_b32 v8, s{60+2*i}")
        a(f"buffer_store_dword v8, v9, s[{s_ws}:{s_ws+3}], s86 offen offset:{4*i}")
```

```python
import sys, importlib
import gen_l1, gen_l2, gen_l3
from asmlib import *
HDR = open("gated_mix__softmax_full_mha__geglu_ffn__prompt.s.ref").read().split("; Override launch")[0]
def build(path):
    a1, _ = gen_l1.gen("l1_kernel")
    a2, _ = gen_l2.gen()
    a3, _ = gen_l3.gen()
    ks = [("l1_kernel", a1, 256, 512, gen_l1.LDS_L1, 256),
          ("l2_kernel", a2, gen_l2.NG + gen_l2.NA, 256, gen_l2.LDS_L2, 168),
          ("l3_kernel", a3, 192, 384, gen_l3.LDS_L3, gen_l3.NV3)]
    import os
    only = os.environ.get("ONLY")
    if only: ks = [k for k in ks if k[0][1] in only]
    s = HDR
    for nm, a, g, b, lds, nv in ks:
        s += f"; @launch kernel={nm} grid=({g},1,1) block=({b},1,1) lds={lds}\n"
    s += '.amdgcn_target "amdgcn-amd-amdhsa--gfx950"\n.text\n'
    for nm, a, g, b, lds, nv in ks:
        s += f".globl {nm}\n.p2align 8\n.type {nm},@function\n{nm}:\n" + a.text()
    s += '.section .rodata,"a"\n.p2align 6\n'
    for nm, a, g, b, lds, nv in ks:
        s += kdesc(nm, nv)
    open(path, "w").write(s)
if __name__ == "__main__":
    import stamp
    if "stamp" in sys.argv: stamp.ON = True
    build(sys.argv[1] if len(sys.argv) > 1 else "full.s")
```

```python
from asmlib import *
from layout import *
import stamp as stm

VX = 112
ACC = [48, 80]
AR = 16; NB = 8; LA = 7
V_L16, V_DMA = 1, 2
V_XD = [3, 15]
V_RB = 4
V_C1 = 10
V_XR = 11
VT = [11, 12, 13, 14, 15, 3, 0]
LDS_L1 = 160 * 1024
SLOT_J = [0, 3, 6, 9, 12, 15]

S_X, S_W0, S_W1, S_WS = 4, 8, 12, 16
S_WAVE, S_MT, S_SL = 20, 21, 22
S_T = 23
S_M0B = 24
S_HOFF = 25
S_C2 = 26
S_CNT = 27
S_COL = 28
S_XB = 29
S_TMP = 30
S_WR = 36
S_XP = 88
S_SC, S_QB = 45, 46

def srd(a, d, src, nbytes):
    a(f"s_mov_b32 s{d}, s{src}\ns_mov_b32 s{d+1}, s{src+1}\ns_mov_b32 s{d+2}, {nbytes}\ns_mov_b32 s{d+3}, 0x00020000")

import os
STORE_FLAGS = os.environ.get("HFLAGS", " sc1")
QFLAGS = os.environ.get("QFLAGS", "")
XFREE = 4
import os
FINE = os.environ.get('FINE') == '1'
FSLOTS = [int(x) for x in os.environ.get('FSLOTS', '').split()]

MAXOUT = int(os.environ.get("MAXOUT", 12))
XLEAD = int(os.environ.get("XLEAD", 4))
PERSLOT = int(os.environ.get("PERSLOT", 2))
WLEAD = int(os.environ.get("WLEAD", 24))
PRE2 = int(os.environ.get("PRE2", 4))
OPENG = int(os.environ.get("OPENG", 3))
PRIO = int(os.environ.get("PRIO", 0))
ABL = os.environ.get("ABL", "")
MERGE = os.environ.get("MERGE", "0 1 0 0 1 0 0 1 0 0 1 0 0")
class Prog:
    XJ = [12, 16]
    def __init__(self, a, phases, merge):
        self.a = a; self.ph = phases
        n = len(phases)
        units = []
        if merge:
            nx = [0, 0]
            for c in MERGE.split():
                units.append((int(c), nx[int(c)])); nx[int(c)] += 1
            assert nx[0] == 9
            units += [(1, p) for p in range(nx[1], 9)]
            self.g_end = 8 * len(MERGE.split())
            first = 2
        else:
            first = 0
        for p in range(first, n): units += [(p, q) for q in range(9)]
        self.units = units
        self.slots = [(p, 4 * q + k, t) for (p, q) in units for k in range(4) for t in range(2)]

    def emit(self, side, pre, exits, late, late2):
        a = self.a
        N = len(self.slots)
        U = self.units
        first_use = {u: 8 * i for i, u in enumerate(U)}
        xfirst = {}
        for i, (p, q) in enumerate(U): xfirst.setdefault(q, 8 * i)
        need = [(max(first_use[u] - WLEAD, 0.5 if first_use[u] else 0), 1, ("W", u)) for u in U] + [(xfirst[q], 2, ("X", q)) for q in range(9)]
        need.sort(key=lambda e: (e[0], e[1]))
        queue = []
        for e in need:
            if e[2][0] == "W": queue.append((e[2], 0))
            else: queue += [(e[2], q) for q in range(4)]
        free = list(range(12))
        busy = []
        jof = {}; issue_pos = {}
        xdone = set(); xread = set(); opened = set()
        cur = [0]
        prio = {}
        def can_issue():
            if not queue: return False
            (kind, v), q = queue[0]
            if kind == "W": return bool(free)
            return v < 2 or (v - 2) in xdone
        def issue():
            (kind, v), q = queue.pop(0)
            if kind == "W":
                j = free.pop(0); jof[v] = j; busy.append((v, j)); issue_pos[v] = cur[0]
                ph = self.ph[v[0]]
                a(f"s_add_u32 m0, s{S_M0B}, {j * 8192}")
                a(f"s_add_u32 s{S_TMP}, s{S_WR + v[1]}, {ph['col']}")
                if "d" in ABL and v[0] >= 2: a.vm.append(("W", v)); a.vm.remove(("W", v))
                else: a.vmem(f"buffer_load_dwordx4 v{V_DMA}, s[{ph['srd']}:{ph['srd']+3}], s{S_TMP} offen lds", ("W", v))
            else:
                a(f"s_add_u32 m0, s{S_M0B}, {(self.XJ[v % 2] + q) * 8192}")
                a(f"s_add_u32 s{S_TMP}, s{S_XP + v}, {q * 8 * 1152}")
                a.vmem(f"buffer_load_dwordx4 v{V_XD[q & 1]}, s[{S_X}:{S_X+3}], s{S_TMP} offen lds", ("X", v))
        def nout(): return sum(1 for t in a.vm if t != "st")
        def pump(k, lim=None):
            while k > 0 and can_issue() and nout() < (lim or MAXOUT):
                issue(); k -= 1
        def ensure(tok):
            while any(e[0] == tok for e in queue):
                assert can_issue(), ("not issuable", tok, queue[0])
                issue()
        def do_xread(q):
            ensure(("X", q))
            a.wait_vm(("X", q))
            for s in range(4):
                r = VX + 4 * (4 * q + s)
                a.lds(f"ds_read_b128 v[{r}:{r+3}], v{V_XR+s} offset:{(q % 2) * 32768}", ("XT", q))
            xread.add(q)
        def open_unit(u):
            ensure(("W", u))
            i = U.index(u)
            grp = [u]
            for v in U[i + 1:i + OPENG]:
                if v in issue_pos and (cur[0] - issue_pos[v] >= 24 or ("W", v) not in a.vm): grp.append(v)
                else: break
            a.wait_vm(("W", grp[-1]))
            if not ("b" in ABL and u[0] >= 2): a("s_barrier")
            opened.update(grp)
            if PRIO:
                n = 8 * len(grp)
                a("s_setprio 3")
                prio.clear()
                for lv in (1, 2, 3): prio[cur[0] + n * lv // 4] = 3 - lv
            for (v, j) in list(busy):
                if first_use[v] + 7 < cur[0]:
                    busy.remove((v, j)); free.append(j)
        def rd(m):
            p, k, t = self.slots[m]
            u = (p, k // 4)
            if u not in opened: open_unit(u)
            j = jof[u]
            va = V_RB + 2 * (j // 8) + t
            off = (j % 8) * 8192 + (k % 4) * 2048
            buf = AR + 4 * (m % NB)
            a.lds(f"ds_read_b64_tr_b16 v[{buf}:{buf+1}], v{va} offset:{off}", ("A", m % NB))
            if "l" not in ABL: a.lds(f"ds_read_b64_tr_b16 v[{buf+2}:{buf+3}], v{va} offset:{off+512}", ("A", m % NB))
        if FINE: stm.stamp(a, 2)
        pump(5)
        late()
        a("s_barrier")
        pump(PRE2, 99)
        late2()
        if FINE: stm.stamp(a, 3)
        do_xread(0)
        pump(4)
        if FINE: stm.stamp(a, 4)
        for m in range(LA): rd(m)
        stm.stamp(a, 5 if FINE else 1)
        for m in range(N):
            p, k, t = self.slots[m]
            for f in pre.get(m, []): f()
            a.wait_lg(("A", m % NB))
            if k // 4 not in xdone: a.wait_lg(("XT", k // 4))
            for q in xread:
                if q not in xdone and ("XT", q) not in a.lg:
                    xdone.add(q)
                    if q >= 7: free.extend(range(self.XJ[q % 2], self.XJ[q % 2] + 4))
            buf = AR + 4 * (m % NB)
            d = ACC[p % 2] + 16 * t
            A = f"v[{buf}:{buf+3}]"; B = f"v[{VX+4*k}:{VX+4*k+3}]"
            if not self.ph[p]["swapped"]: A, B = B, A
            c = "0" if k == 0 else f"v[{d}:{d+15}]"
            a(f"v_mfma_f32_32x32x16_bf16 v[{d}:{d+15}], {A}, {B}, {c}")
            cur[0] = m + 1
            if cur[0] in prio: a(f"s_setprio {prio[cur[0]]}")
            if m + LA < N: rd(m + LA)
            for q in range(9):
                if q not in xread and xfirst[q] - XLEAD <= m: do_xread(q)
            pump(PERSLOT)
            for f in side.get(m, []): f()
            if m in exits: exits[m]()
            if FINE:
                if m == 15: stm.stamp(a, 6)
                if m == 47: stm.stamp(a, 7)
            elif FSLOTS:
                if m + 1 in FSLOTS: stm.stamp(a, 2 + FSLOTS.index(m + 1))
            elif (m + 1) % 72 == 0 and (m + 1) // 72 <= 6: stm.stamp(a, 1 + (m + 1) // 72)

def spread(d, items, start, end):
    n = end - start
    for i, it in enumerate(items):
        d.setdefault(start + i * n // len(items), []).append(it)
    return d

def gelu_items(a, G, n=32):
    items = []
    if "g" in ABL: return [lambda: None]
    for g in range(n // 4):
        xs = [G + 4 * g + i for i in range(4)]
        ts = VT[:4]
        seq = []
        seq += [f"v_mul_f32 v{t}, v{x}, v{x}" for x, t in zip(xs, ts)]
        seq += [f"v_fma_f32 v{t}, v{t}, s{S_C2}, v{V_C1}" for x, t in zip(xs, ts)]
        seq += [f"v_mul_f32 v{t}, v{t}, v{x}" for x, t in zip(xs, ts)]
        seq += [f"v_exp_f32 v{t}, v{t}" for x, t in zip(xs, ts)]
        seq += [f"v_add_f32 v{t}, 1.0, v{t}" for x, t in zip(xs, ts)]
        seq += [f"v_rcp_f32 v{t}, v{t}" for x, t in zip(xs, ts)]
        seq += [f"v_mul_f32 v{x}, v{t}, v{x}" for x, t in zip(xs, ts)]
        items += [(lambda s=s: a(s)) for s in seq]
    return items
def fin_mul(a, t):
    G, U = ACC
    return [(lambda i=i: a(f"v_mul_f32 v{U+16*t+i}, v{G+16*t+i}, v{U+16*t+i}")) for i in range(16)]
def fin_store(a):
    items = []
    for t in range(2):
        b = ACC[1] + 16 * t
        for j in range(2):
            for i in range(4):
                k = 4 * j + i
                items.append(lambda k=k, b=b: a(f"v_cvt_pk_bf16_f32 v{b+k}, v{b+2*k}, v{b+2*k+1}"))
            items.append(lambda j=j, b=b, t=t: a.vmem(f"buffer_store_dwordx4 v[{b+4*j}:{b+4*j+3}], v{V_L16}, s[{S_WS}:{S_WS+3}], s{S_HOFF} offen offset:{t*2048+j*1024}{STORE_FLAGS}", "st"))
    items.append(lambda: a(f"s_add_u32 s{S_HOFF}, s{S_HOFF}, 4096"))
    return items

def qk_epi(a, acc):
    L = []
    L.append(f"""s_cmp_ge_u32 s{S_COL}, 576
    s_cselect_b32 s{S_SC}, 1.0, {hex(f2u(QSCALE))}
    s_cselect_b32 s{S_QB}, {WS_K - WS_Q}, 0
    s_cselect_b32 s{S_TMP+1}, 576, 0
    s_sub_u32 s{S_TMP+1}, s{S_COL}, s{S_TMP+1}
    s_add_u32 s{S_QB}, s{S_QB}, s{S_HOFF}
    s_add_u32 s{S_COL}, s{S_COL}, 64""")
    for t in range(2):
        for aa in range(4):
            for bp in range(2):
                r = acc + 16 * t + 4 * aa + 2 * bp
                co = 32 * t + 8 * aa + 2 * bp
                L += [f"v_add3_u32 v11, v10, s{S_TMP+1}, {co}",
                      f"v_mul_u32_u24 v12, s{S_TMP+2}, v11",
                      f"v_lshrrev_b32 v12, 16, v12",
                      f"v_mul_u32_u24 v13, 18, v12",
                      f"v_sub_u32 v13, v11, v13",
                      f"v_mad_u32_u24 v14, v12, s{S_TMP+3}, v0",
                      f"v_and_b32 v12, 24, v13",
                      f"v_lshl_add_u32 v14, v12, 6, v14",
                      f"v_and_b32 v12, 7, v13",
                      f"v_lshl_add_u32 v14, v12, 1, v14",
                      f"v_mul_f32 v{r}, s{S_SC}, v{r}",
                      f"v_mul_f32 v{r+1}, s{S_SC}, v{r+1}",
                      f"v_cvt_pk_bf16_f32 v{r}, v{r}, v{r+1}",
                      ("vm", f"buffer_store_dword v{r}, v14, s[{S_WS}:{S_WS+3}], s{S_QB} offen{QFLAGS}")]
    return [(lambda s=s: a.vmem(s[1], "st") if isinstance(s, tuple) else a(s)) for s in L]
def v_epi(a, acc):
    L = [f"s_sub_u32 s{S_TMP+1}, s{S_COL}, 1152\ns_add_u32 s{S_COL}, s{S_COL}, 64"]
    for t in range(2):
        b = acc + 16 * t
        L += [f"v_add3_u32 v11, v10, s{S_TMP+1}, {32*t}",
              f"v_mul_u32_u24 v12, s{S_TMP+2}, v11",
              f"v_lshrrev_b32 v12, 16, v12",
              f"v_mul_u32_u24 v13, 18, v12",
              f"v_sub_u32 v13, v11, v13",
              f"v_mad_u32_u24 v14, v12, s{S_TMP+3}, v0",
              f"v_lshl_add_u32 v14, v13, 4, v14"]
        L += [f"v_cvt_pk_bf16_f32 v{b+k}, v{b+2*k}, v{b+2*k+1}" for k in range(8)]
        L += [("vm", f"buffer_store_dwordx4 v[{b}:{b+3}], v14, s[{S_WS}:{S_WS+3}], s{S_HOFF} offen{QFLAGS}"),
              ("vm", f"buffer_store_dwordx4 v[{b+4}:{b+7}], v14, s[{S_WS}:{S_WS+3}], s{S_HOFF} offen offset:640{QFLAGS}")]
    return [(lambda s=s: a.vmem(s[1], "st") if isinstance(s, tuple) else a(s)) for s in L]

XPOS_MERGE = {0: 0, 1: 2, 2: 12, 3: 24, 4: 36, 5: 46, 6: 56, 7: 66, 8: 76}
XPOS_PLAIN = {0: 0, 1: 1, 2: 8, 3: 16, 4: 24, 5: 32, 6: 40, 7: 48, 8: 56}

def rows_first(a, stride, scol):
    a(f"s_mul_i32 s47, s{S_WAVE}, {8*stride}\ns_add_u32 s47, s47, s{scol}")
    a(f"s_mul_i32 s{S_WR}, s34, {64*stride}\ns_add_u32 s{S_WR}, s{S_WR}, s47")
def late_setup(a, stride):
    a(f"s_add_u32 s33, s47, {9*64*stride}\ns_add_u32 s35, s{S_XB}, {9*128}")
    for p in range(1, 9):
        a(f"s_add_u32 s{S_WR+p}, s{S_WR+p-1}, {64*stride}\ns_cmp_eq_u32 s{S_WR+p}, s33\ns_cselect_b32 s{S_WR+p}, s47, s{S_WR+p}")
        a(f"s_add_u32 s{S_XP+p}, s{S_XP+p-1}, 128\ns_cmp_eq_u32 s{S_XP+p}, s35\ns_cselect_b32 s{S_XP+p}, s{S_XB}, s{S_XP+p}")
def late_valu(a):
    a(f"""
    v_lshlrev_b32 v{V_L16}, 4, v0
    v_and_b32 v21, 15, v0
    v_lshrrev_b32 v22, 2, v21       ; r
    v_and_b32 v21, 3, v21           ; c
    v_lshrrev_b32 v23, 5, v0        ; hf
    v_lshl_add_u32 v24, v23, 3, v22 ; 8hf + r
    v_lshlrev_b32 v24, 7, v24
    v_lshl_add_u32 v24, v21, 3, v24
    v_and_b32 v21, 16, v0
    v_lshl_add_u32 v24, v21, 1, v24
    v_and_b32 v22, 2, v22
    v_lshl_add_u32 v{V_RB}, v22, 5, v24
    v_xor_b32 v{V_RB+1}, 64, v{V_RB}
    v_add_u32 v{V_RB+2}, 0x10000, v{V_RB}
    v_add_u32 v{V_RB+3}, 0x10000, v{V_RB+1}
    v_add_u32 v{V_RB+4}, 0x20000, v{V_RB}
    v_add_u32 v{V_RB+5}, 0x20000, v{V_RB+1}
    v_and_b32 v21, 31, v0
    v_lshrrev_b32 v22, 1, v21
    v_and_b32 v22, 7, v22
    v_xor_b32 v22, v22, v23
    v_lshlrev_b32 v22, 4, v22
    v_and_b32 v24, 7, v21
    v_lshl_add_u32 v22, v24, 7, v22
    v_lshrrev_b32 v24, 3, v21
    v_lshl_add_u32 v22, v24, 13, v22
    s_add_u32 s33, s{S_M0B}, 0x18000
    v_add_u32 v{V_XR}, s33, v22
    v_xor_b32 v{V_XR+1}, 32, v{V_XR}
    v_xor_b32 v{V_XR+2}, 64, v{V_XR}
    v_xor_b32 v{V_XR+3}, 96, v{V_XR}
    """)

def gen(name):
    a = Asm()
    a("s_load_dwordx4 s[48:51], s[0:1], 0")
    a("s_load_dwordx4 s[52:55], s[0:1], 32")
    a("s_load_dwordx2 s[56:57], s[0:1], 80")
    a("s_load_dwordx2 s[58:59], s[0:1], 56")
    a(f"s_cmp_ge_u32 s2, 256\ns_cbranch_scc1 L1_END")
    stm.begin(a)
    a(f"""
    v_lshrrev_b32 v16, 6, v0
    v_and_b32 v0, 63, v0
    v_readfirstlane_b32 s{S_WAVE}, v16
    s_and_b32 s30, s2, 7            ; xcd
    s_lshr_b32 s31, s2, 3           ; j
    s_and_b32 s32, s30, 1
    s_lshl_b32 s32, s32, 2
    s_and_b32 s33, s31, 3           ; m local
    s_add_u32 s{S_MT}, s32, s33     ; mtile
    s_lshr_b32 s35, s30, 1          ; xn
    s_lshr_b32 s{S_SL}, s31, 2      ; s (0..7)
    s_lshl_b32 s34, s33, 1
    s_add_u32 s34, s34, s{S_SL}
    s_cmp_ge_u32 s34, 9
    s_cselect_b32 s33, 9, 0
    s_sub_u32 s34, s34, s33         ; rotation r
    v_lshrrev_b32 v17, 3, v0
    v_and_b32 v18, 7, v0            ; position
    v_lshrrev_b32 v19, 4, v0
    v_xor_b32 v19, v19, v18
    v_lshlrev_b32 v19, 4, v19
    v_mul_u32_u24 v20, 1152, v17
    v_add_u32 v{V_XD[0]}, v20, v19
    v_xor_b32 v19, 64, v19
    v_add_u32 v{V_XD[1]}, v20, v19
    v_lshlrev_b32 v20, 1, v17
    v_and_b32 v20, 4, v20
    v_xor_b32 v20, v20, v18
    v_lshlrev_b32 v20, 4, v20       ; seg*16
    s_lshl_b32 s{S_M0B}, s{S_WAVE}, 10
    s_lshl_b32 s{S_T}, s{S_MT}, 3
    s_add_u32 s{S_T}, s{S_T}, s{S_WAVE}
    s_mul_i32 s{S_XB}, s{S_T}, {32*1152}
    s_lshl_b32 s{S_XP}, s34, 7
    s_add_u32 s{S_XP}, s{S_XP}, s{S_XB}
    s_mov_b32 s{S_X+2}, {2048*1152}
    s_mov_b32 s{S_X+3}, 0x00020000
    s_mov_b32 s{S_W0+3}, 0x00020000
    """)
    a(f"s_cmp_ge_u32 s{S_SL}, 6\ns_cbranch_scc1 L1_QKV")

    ST = 9216
    a(f"""
    v_mul_u32_u24 v{V_DMA}, {ST}, v17
    v_add_u32 v{V_DMA}, v{V_DMA}, v20
    s_mul_i32 s35, s35, 6
    s_add_u32 s46, s35, s{S_SL}
    s_mul_i32 s35, s46, 384
    s_mov_b32 s{S_W0+2}, {576*ST}
    """)
    rows_first(a, ST, 35)
    if FINE: stm.stamp(a, 1)
    a("s_waitcnt lgkmcnt(0)")
    a(f"s_mov_b32 s{S_X}, s48\ns_mov_b32 s{S_X+1}, s49\ns_mov_b32 s{S_W0}, s52\ns_mov_b32 s{S_W0+1}, s53")
    def late_ffn():
        srd(a, S_W1, 54, 576 * ST)
        late_setup(a, ST)
    def late2_ffn():
        srd(a, S_WS, 56, WS_SIZE)
        late_valu(a)
        a(f"""
        v_mov_b32 v{V_C1}, {hex(f2u(GC1))}
        s_mov_b32 s{S_C2}, {hex(f2u(GC2))}
        s_mul_i32 s{S_HOFF}, s{S_T}, {288*1024}
        s_mul_i32 s33, s46, {12*1024}
        s_add_u32 s{S_HOFF}, s{S_HOFF}, s33
        """)
    ph = []
    for i in range(3):
        ph.append(dict(srd=S_W0, col=128 * i, swapped=True))
        ph.append(dict(srd=S_W1, col=128 * i, swapped=True))
    P = Prog(a, ph, True)
    side = {}; pre = {}
    spread(side, gelu_items(a, ACC[0]), P.g_end + 3, 143)
    for i in (1, 2):
        b = 144 * i
        pre[b] = fin_mul(a, 0); pre[b + 1] = fin_mul(a, 1)
        spread(side, fin_store(a), b + 3, b + 40)
        spread(side, gelu_items(a, ACC[0]), b + 72 + 3, b + 142)
    P.emit(side, pre, {}, late_ffn, late2_ffn)
    for f in fin_mul(a, 0) + fin_mul(a, 1) + fin_store(a): f()
    stm.end(a, S_WS, S_WAVE, 0)
    a("s_endpgm")

    a.label("L1_QKV")
    ST = 3456
    a(f"""
    v_mul_u32_u24 v{V_DMA}, {ST}, v17
    v_add_u32 v{V_DMA}, v{V_DMA}, v20
    s_lshl_b32 s35, s35, 1
    s_add_u32 s35, s35, s{S_SL}
    s_sub_u32 s{S_SL}, s35, 6
    s_lshl_b32 s32, s{S_SL}, 2
    s_mul_i32 s33, s{S_SL}, 3
    s_add_u32 s33, s33, 3
    s_cmp_le_u32 s{S_SL}, 3
    s_cselect_b32 s32, s32, s33         ; start phase
    s_lshl_b32 s{S_COL}, s32, 6
    s_lshl_b32 s35, s32, 7
    """)
    a(f"s_mov_b32 s{S_W0+2}, {576*ST}")
    rows_first(a, ST, 35)
    a("s_waitcnt lgkmcnt(0)")
    a(f"s_mov_b32 s{S_X}, s48\ns_mov_b32 s{S_X+1}, s49\ns_mov_b32 s{S_W0}, s50\ns_mov_b32 s{S_W0+1}, s51")
    late_q = lambda: late_setup(a, 3456)
    a(f"s_cmp_ge_u32 s{S_SL}, 5\ns_cbranch_scc1 L1_V")
    def late2_qk():
        srd(a, S_WS, 56, WS_SIZE)
        late_valu(a)
        a(f"""
        s_movk_i32 s{S_TMP+2}, 3641
        s_mov_b32 s{S_TMP+3}, {QK_HS}
        s_mul_i32 s{S_HOFF}, s{S_T}, 1536
        s_add_u32 s{S_HOFF}, s{S_HOFF}, {WS_Q}
        v_lshlrev_b32 v10, 2, v23
        v_lshlrev_b32 v0, 4, v21
        """)
    a.vm = []; a.lg = []
    P = Prog(a, [dict(srd=S_W0, col=128 * i, swapped=True) for i in range(4)], False)
    side = {}
    for i in range(1, 4): spread(side, qk_epi(a, ACC[(i - 1) % 2]), 72 * i + 3, 72 * i + 70)
    def exit3():
        a(f"s_cmp_ge_u32 s{S_SL}, 3\ns_cbranch_scc1 L1_QK3")
    P.emit(side, {}, {215: exit3}, late_q, late2_qk)
    for f in qk_epi(a, ACC[1]): f()
    stm.end(a, S_WS, S_WAVE, 0)
    a("s_endpgm")
    a.label("L1_QK3")
    for f in qk_epi(a, ACC[0]): f()
    stm.end(a, S_WS, S_WAVE, 0)
    a("s_endpgm")
    a.label("L1_V")
    def late2_v():
        srd(a, S_WS, 56, WS_SIZE)
        late_valu(a)
        a(f"""
        s_movk_i32 s{S_TMP+2}, 3641
        s_mov_b32 s{S_TMP+3}, {64*1280}
        s_mul_i32 s{S_HOFF}, s{S_T}, 1280
        s_add_u32 s{S_HOFF}, s{S_HOFF}, {WS_V}
        v_mov_b32 v10, v21
        v_mul_u32_u24 v0, 320, v23
        """)
    a.vm = []; a.lg = []
    P = Prog(a, [dict(srd=S_W0, col=128 * i, swapped=False) for i in range(3)], False)
    side = {}
    for i in range(1, 3): spread(side, v_epi(a, ACC[(i - 1) % 2]), 72 * i + 3, 72 * i + 40)
    P.emit(side, {}, {}, late_q, late2_v)
    for f in v_epi(a, ACC[0]): f()
    a(f"s_cmp_lg_u32 s{S_SL}, 7\ns_cbranch_scc1 L1_END")
    srd(a, S_W1, 58, 1152)
    a(f"v_lshrrev_b32 v11, 9, v{V_L16}\nv_lshlrev_b32 v11, 4, v11")
    a.vm = []
    GB = [16 + 4 * i for i in range(8)] + [96 + 4 * i for i in range(4)]
    D = ACC[1]
    for rnd in range(3):
        for i in range(12):
            ks = rnd * 12 + i
            if i % 4 == 0: a(f"s_sub_u32 s{S_TMP}, s{S_XP + ks // 4}, s{S_XB}")
            a.vmem(f"buffer_load_dwordx4 v[{GB[i]}:{GB[i]+3}], v11, s[{S_W1}:{S_W1+3}], s{S_TMP} offen offset:{(ks%4)*32}", i)
        for i in range(12):
            ks = rnd * 12 + i
            a.wait_vm(i)
            c = "0" if ks == 0 else f"v[{D}:{D+15}]"
            a(f"v_mfma_f32_32x32x16_bf16 v[{D}:{D+15}], v[{GB[i]}:{GB[i]+3}], v[{VX+4*ks}:{VX+4*ks+3}], {c}")
    a(f"""
    v_mul_f32 v12, {hex(f2u(-math.log2(math.e)))}, v{D}
    v_exp_f32 v12, v12
    v_add_f32 v12, 1.0, v12
    v_rcp_f32 v12, v12
    v_lshlrev_b32 v13, 2, v10
    s_lshl_b32 s30, s{S_T}, 7
    s_add_u32 s30, s30, {WS_G}
    buffer_store_dword v12, v13, s[{S_WS}:{S_WS+3}], s30 offen
    """)
    a.label("L1_END")
    a("s_endpgm")
    n = a.fix()
    return a, n
if __name__ == "__main__":
    a, n = gen("l1_kernel"); print(n, len(a.ins))
    m = 0
    for x in a.ins:
        if x.kind == "mfma": m += 1
        if m > 160: break
        if x.kind == "vmem" or x.op in ("s_barrier",) or "vmcnt" in x.text or x.op == "ds_read_b128": print(m, x.text)
```

```python
from asmlib import *
from layout import *
import os
TOUCH = int(os.environ.get("TOUCH", 0))
ABL2 = os.environ.get('ABL2', '')
import stamp as stm

NG = 256
NA = 512
LDS_L2 = 52 * 1024
S_WS = 4
S_WD = 8
S_WAVE = 20

def srd(a, d, src, nbytes):
    a(f"s_mov_b32 s{d}, s{src}\ns_mov_b32 s{d+1}, s{src+1}\ns_mov_b32 s{d+2}, {nbytes}\ns_mov_b32 s{d+3}, 0x00020000")

V_L16, V_KR, V_V = 1, 2, 3
V_M = 4
V_T = 8
QM = 12
QR = 28
OA = 44
SB = 96
PB = 128
KV = 136
S_KM, S_KE, S_V = 21, 22, 23
S_KM0, S_VE, S_V0 = 24, 25, 26
S_CNT, S_NMAX = 27, 28
S_VM = 30
S_H, S_QB = 32, 33

def oacc(i): return f"v[{OA+12*i}:{OA+12*i+15}]"
def kmain(b): return f"v[{KV+16*b}:{KV+16*b+3}]"
def krem(b): return f"v[{KV+16*b+4}:{KV+16*b+7}]"
def vfr(b, j): return f"v[{KV+16*b+8+4*j}:{KV+16*b+11+4*j}]"
def sbuf(s): return f"v[{SB+16*s}:{SB+16*s+15}]"

def load_k(a, b, jpos, tok):
    a.vmem(f"buffer_load_dwordx4 {kmain(b)}, v{V_L16}, s[{S_WS}:{S_WS+3}], s{S_KM} offen", tok)
    a.vmem(f"buffer_load_dword v{KV+16*b+4}, v{V_KR}, s[{S_WS}:{S_WS+3}], s{S_KM} offen offset:1024", tok)
    a(f"s_add_u32 s{S_KM}, s{S_KM}, 1536\ns_cmp_eq_u32 s{S_KM}, s{S_KE}\ns_cselect_b32 s{S_KM}, s{S_KM0}, s{S_KM}")
def load_v(a, b, tok):
    a(f"s_mov_b64 exec, s[{S_VM}:{S_VM+1}]")
    a.vmem(f"buffer_load_dwordx4 {vfr(b,0)}, v{V_V}, s[{S_WS}:{S_WS+3}], s{S_V} offen", tok)
    a.vmem(f"buffer_load_dwordx4 {vfr(b,1)}, v{V_V}, s[{S_WS}:{S_WS+3}], s{S_V} offen offset:640", tok)
    a(f"s_mov_b64 exec, -1")
    a(f"s_add_u32 s{S_V}, s{S_V}, 1280\ns_cmp_eq_u32 s{S_V}, s{S_VE}\ns_cselect_b32 s{S_V}, s{S_V0}, s{S_V}")

def qk1(a, s, b, i): a(f"v_mfma_f32_32x32x16_bf16 {sbuf(s)}, {kmain(b)}, v[{QM+4*i}:{QM+4*i+3}], 0")
def qk2(a, s, b, i): a(f"v_mfma_f32_32x32x16_bf16 {sbuf(s)}, {krem(b)}, v[{QR+4*i}:{QR+4*i+3}], {sbuf(s)}")
def pv(a, b, i, j): a(f"v_mfma_f32_32x32x16_bf16 {oacc(i)}, {vfr(b,j)}, v[{PB+4*j}:{PB+4*j+3}], {oacc(i)}")

def attn_body(a):
    if "a" in ABL2:
        sv = a.vmem; a.vmem = lambda text, tok=None: None
        a("s_waitcnt vmcnt(0)"); a.vm = []
        try: attn_body2(a)
        finally: a.vmem = sv
    else: attn_body2(a)
def attn_body2(a):
    for t in range(8):
        b, i, s = t // 4, t % 4, t % 2
        S = SB + 16 * s
        e = lambda k: a(f"v_exp_f32 v{S+k}, v{S+k}")
        c = lambda k: a(f"v_cvt_pk_bf16_f32 v{PB+k}, v{S+2*k}, v{S+2*k+1}")
        pb, pi = ((t - 1) % 8) // 4, (t - 1) % 4
        nb, ni = ((t + 1) % 8) // 4, (t + 1) % 4
        e(0); e(1)
        pv(a, pb, pi, 1)
        if i == 0: load_v(a, 1 - b, ("V", 1 - b))
        e(2); e(3); c(0); e(4)
        if ni == 0: a.wait_vm(("K", nb))
        qk1(a, 1 - s, nb, ni)
        e(5); c(1); e(6); e(7); c(2)
        qk2(a, 1 - s, nb, ni)
        if ni == 3: load_k(a, nb, None, ("K", nb))
        e(8); e(9); c(3); e(10); e(11); c(4)
        if i == 0: a.wait_vm(("V", b))
        pv(a, b, i, 0)
        e(12); e(13); c(5); e(14); e(15); c(6); c(7)

import os
ABL2 = os.environ.get("ABL2", "")
PFLAGS = os.environ.get("PFLAGS", " sc1")
RAMP = os.environ.get("RAMP", "")
AFIRST = int(os.environ.get("AFIRST", 1))
AROT = int(os.environ.get("AROT", 1)); GROT = int(os.environ.get("GROT", 0))
PA1 = int(os.environ.get("PA1", 3)); PA2 = int(os.environ.get("PA2", 3)); PG = int(os.environ.get("PG", 0))
def max_tile(a, b):
    for i in range(4):
        qk1(a, i % 2, b, i); qk2(a, i % 2, b, i)
        if i > 0:
            S = SB + 16 * ((i - 1) % 2)
            for k in range(8): a(f"v_max3_f32 v{V_M+i-1}, v{S+2*k}, v{S+2*k+1}, v{V_M+i-1}")
    S = SB + 16
    for k in range(8): a(f"v_max3_f32 v{V_M+3}, v{S+2*k}, v{S+2*k+1}, v{V_M+3}")

def gen_attn(a):
    a.label("L2_ATT")
    a(f"""
    s_setprio 3
    s_sub_u32 s34, s2, {NG}
    s_and_b32 s35, s34, 7
    s_lshr_b32 s34, s34, 3            ; 0..63
    s_lshr_b32 s36, s34, 4
    s_lshl_b32 s35, s35, 2
    s_add_u32 s{S_H}, s35, s36        ; head
    s_and_b32 s{S_QB}, s34, 15
    v_lshlrev_b32 v{V_L16}, 4, v0
    v_and_b32 v8, 31, v0
    v_lshlrev_b32 v{V_KR}, 4, v8
    v_lshrrev_b32 v9, 5, v0
    v_mul_u32_u24 v10, 320, v9
    v_add_u32 v{V_V}, v10, v{V_KR}
    s_mov_b32 s{S_VM}, 0x3ffff
    s_mov_b32 s{S_VM+1}, 0x3ffff
    s_mul_i32 s34, s{S_H}, {QK_HS}
    s_mul_i32 s35, s{S_QB}, {4*1536}
    s_add_u32 s35, s35, s34
    s_add_u32 s35, s35, {WS_Q}
    s_add_u32 s37, s35, {2*1536}
    s_mul_i32 s36, s{S_WAVE}, {16*1536}
    s_add_u32 s{S_KM0}, s34, s36
    s_add_u32 s{S_KM0}, s{S_KM0}, {WS_K}
    s_lshl_b32 s34, s{S_H}, 6
    s_lshl_b32 s36, s{S_WAVE}, 4
    s_add_u32 s34, s34, s36
    s_mul_i32 s{S_V0}, s34, 1280
    s_add_u32 s{S_V0}, s{S_V0}, {WS_V}
    s_mov_b32 s{S_NMAX}, 1
    s_add_u32 s{S_KE}, s{S_KM0}, {16*1536}
    s_add_u32 s{S_VE}, s{S_V0}, {16*1280}
    s_mul_i32 s{S_KM}, s{S_QB}, {1536*AROT}
    s_add_u32 s{S_KM}, s{S_KM}, s{S_KM0}
    s_mul_i32 s{S_V}, s{S_QB}, {1280*AROT}
    s_add_u32 s{S_V}, s{S_V}, s{S_V0}
    v_cmp_eq_u32 vcc, 18, v8
    v_mov_b32 v10, 0x3f803f80
    v_cndmask_b32 v11, 0, v10, vcc
    """)
    for k in range(8): a(f"v_mov_b32 v{KV+8+k}, v11")
    for i in range(4): a(f"v_mov_b32 v{QR+4*i}, 0")
    a("s_waitcnt lgkmcnt(0)")
    srd(a, S_WS, 48, WS_SIZE)
    a.vm = []
    load_k(a, 0, None, ("K", 0))
    for i in range(4):
        so = 35 if i < 2 else 37
        a.vmem(f"buffer_load_dwordx4 v[{QM+4*i}:{QM+4*i+3}], v{V_L16}, s[{S_WS}:{S_WS+3}], s{so} offen offset:{1536*(i%2)}", "Q")
    a("s_mov_b32 exec_hi, 0")
    for i in range(4):
        so = 35 if i < 2 else 37
        a.vmem(f"buffer_load_dword v{QR+4*i}, v{V_KR}, s[{S_WS}:{S_WS+3}], s{so} offen offset:{1536*(i%2)+1024}", "Q")
    load_v(a, 0, ("V", 0))
    load_k(a, 1, None, ("K", 1))
    if PA1 == PA2 == 3: pass
    elif PA1 == PA2: a(f"s_setprio {PA1}")
    else:
        a(f"s_setprio {PA1}\ns_cmp_lt_u32 s2, {NG+256}\ns_cbranch_scc1 L2_PR\ns_setprio {PA2}")
        a.label("L2_PR")
    for b in range(2):
        a(f"v_mov_b32 v{KV+16*b+5}, v10\nv_mov_b32 v{KV+16*b+6}, 0\nv_mov_b32 v{KV+16*b+7}, 0")
    for k in range(8): a(f"v_mov_b32 v{KV+16+8+k}, v11")
    for i in range(4):
        a(f"v_mov_b32 v{QR+4*i+1}, 0\nv_mov_b32 v{QR+4*i+2}, 0\nv_mov_b32 v{QR+4*i+3}, 0\nv_mov_b32 v{V_M+i}, 0xff800000")
    stm.stamp(a, 1)
    a.wait_vm("Q")
    stm.stamp(a, 4)
    max_tile(a, 0)
    a.label("L2_SETM")
    for k in range(4, 8): a(f"v_mov_b32 v{PB+k}, 0")
    a("v_cmp_gt_u32 vcc, 32, v0")
    for i in range(4):
        m = V_M + i
        a(f"""
        v_mov_b32 v8, v{m}
        v_mov_b32 v9, v{m}
        v_mfma_f32_32x32x16_bf16 {oacc(i)}, v[{PB+4}:{PB+7}], v[{PB+4}:{PB+7}], 0
        v_permlane32_swap_b32 v8, v9
        v_max_f32 v{m}, v8, v9
        v_sub_f32 v8, 0, v{m}                 ; -m
        v_and_b32 v9, 0xffff0000, v8          ; hi
        v_sub_f32 v8, v8, v9                  ; r1
        v_and_b32 v10, 0xffff0000, v8         ; mid
        v_sub_f32 v8, v8, v10
        v_lshrrev_b32 v9, 16, v9
        v_or_b32 v9, v9, v10                  ; [mid:hi]
        v_lshrrev_b32 v8, 16, v8              ; [0:lo]
        v_cndmask_b32 v{QR+4*i+1}, v8, v9, vcc
        """)
        if i == 1:
            qk1(a, 0, 0, 0); qk2(a, 0, 0, 0)
    a(f"s_mov_b32 s{S_CNT}, 8")
    stm.stamp(a, 2)
    a.label("L2_AL")
    vm_entry = list(a.vm)
    n0 = len(a.ins)
    attn_body(a)
    txt1 = [x.text for x in a.ins[n0:]]
    b2 = Asm(); b2.vm = list(a.vm); attn_body(b2)
    txt2 = [x.text for x in b2.ins]
    if txt1 != txt2:
        for x, y in zip(txt1, txt2):
            if x != y: print("ATT steady mismatch:", x, "|", y)
        raise SystemExit(1)
    a(f"s_sub_u32 s{S_CNT}, s{S_CNT}, 1")
    for i, tok in enumerate(RAMP.split()):
        cnt, pr = tok.split(":")
        a(f"s_cmp_lg_u32 s{S_CNT}, {cnt}\ns_cbranch_scc1 L2_RP{i}\ns_setprio {pr}")
        a.label(f"L2_RP{i}")
    a(f"s_cmp_lg_u32 s{S_CNT}, 0\ns_cbranch_scc1 L2_AL")
    a("s_setprio 3")
    pv(a, 1, 3, 1)
    stm.stamp(a, 3)
    a("v_mov_b32 v8, 0\nv_mov_b32 v9, 0")
    a(f"""
    s_mul_i32 s38, s{S_WAVE}, {4*3328}
    v_add_u32 v{SB}, s38, v{V_L16}
    v_lshlrev_b32 v{SB+1}, 2, v0
    v_add_u32 v{SB+1}, s38, v{SB+1}
    """)
    for i in range(4):
        for k in range(0, 12, 2):
            a(f"v_pk_fma_f32 v[8:9], v[{OA+12*i+k}:{OA+12*i+k+1}], 0, v[8:9]")
    a(f"""
    v_add_f32 v8, v8, v9
    v_min_f32 v9, v{OA+10}, v{OA+22}
    v_min3_f32 v9, v{OA+34}, v{OA+46}, v9
    v_max_f32 v10, v{OA+10}, v{OA+22}
    v_max3_f32 v10, v{OA+34}, v{OA+46}, v10
    v_cmp_eq_f32 s[34:35], 0, v8
    v_cmp_lt_f32 vcc, {hex(f2u(2.0**-30))}, v9
    s_or_b32 vcc_hi, vcc_hi, -1
    s_and_b64 s[34:35], s[34:35], vcc
    v_cmp_gt_f32 vcc, {hex(f2u(2.0**30))}, v10
    s_and_b64 s[34:35], s[34:35], vcc
    s_cmp_eq_u64 s[34:35], -1
    s_cbranch_scc1 L2_AOK
    s_cmp_eq_u32 s{S_NMAX}, 16
    s_cbranch_scc1 L2_AOK
    """)
    a(f"s_mov_b32 s{S_NMAX}, 16\ns_mov_b32 s{S_KM}, s{S_KM0}\ns_mov_b32 s{S_CNT}, 16\ns_waitcnt vmcnt(0)")
    for i in range(4):
        a(f"v_mov_b32 v{QR+4*i+1}, 0\nv_mov_b32 v{V_M+i}, 0xff800000")
    a.label("L2_MAXL")
    a.vm = []
    load_k(a, 0, None, "k")
    a.wait_vm("k")
    max_tile(a, 0)
    a(f"s_sub_u32 s{S_CNT}, s{S_CNT}, 1\ns_cmp_lg_u32 s{S_CNT}, 0\ns_cbranch_scc1 L2_MAXL")
    a(f"s_mov_b32 s{S_KM}, s{S_KM0}\ns_mov_b32 s{S_V}, s{S_V0}")
    load_k(a, 0, None, ("K", 0))
    load_v(a, 0, ("V", 0))
    load_k(a, 1, None, ("K", 1))
    a("s_waitcnt vmcnt(0)\ns_branch L2_SETM")
    a.label("L2_AOK")
    for i in range(4):
        for ch in range(3):
            a(f"ds_write_b128 v{SB}, v[{OA+12*i+4*ch}:{OA+12*i+4*ch+3}] offset:{i*3328+ch*1024}")
        a(f"ds_write_b32 v{SB+1}, v{V_M+i} offset:{i*3328+3072}")
    a(f"""
    s_mul_i32 s34, s{S_WAVE}, 3328
    v_add_u32 v8, s34, v{V_L16}
    v_lshlrev_b32 v9, 2, v0
    v_add_u32 v9, s34, v9
    v_add_u32 v10, s34, v{V_KR}
    s_lshl_b32 s34, s{S_QB}, 2
    s_add_u32 s34, s34, s{S_WAVE}
    s_mul_i32 s34, s34, {36*1024}
    s_add_u32 s34, s34, {WS_O}
    s_lshl_b32 s35, s{S_H}, 10
    s_add_u32 s35, s35, s34
    s_lshr_b32 s36, s{S_H}, 2
    s_lshl_b32 s36, s36, 9
    s_add_u32 s34, s34, s36
    s_and_b32 s36, s{S_H}, 3
    s_lshl_b32 s36, s36, 2
    s_add_u32 s34, s34, s36
    s_add_u32 s34, s34, {32*1024}
    s_waitcnt vmcnt(0) lgkmcnt(0)
    s_barrier
    """)
    R0 = 12
    for w in range(4):
        a(f"ds_read_b32 v{R0+16*w+12}, v9 offset:{w*4*3328+3072}")
        a(f"ds_read_b32 v{R0+16*w+13}, v10 offset:{w*4*3328+2048+8}")
    for w in range(4):
        for ch in range(2):
            a(f"ds_read_b128 v[{R0+16*w+4*ch}:{R0+16*w+4*ch+3}], v8 offset:{w*4*3328+ch*1024}")
        a(f"ds_read_b64 v[{R0+16*w+8}:{R0+16*w+9}], v8 offset:{w*4*3328+2048}")
    a("s_waitcnt lgkmcnt(12)")
    a(f"v_max_f32 v8, v{R0+12}, v{R0+28}\nv_max3_f32 v8, v{R0+44}, v{R0+60}, v8")
    for w in range(4):
        a(f"v_sub_f32 v{R0+16*w+12}, v{R0+16*w+12}, v8")
    for w in range(4):
        a(f"v_exp_f32 v{R0+16*w+12}, v{R0+16*w+12}")
    a(f"v_mul_f32 v9, v{R0+13}, v{R0+12}")
    for w in range(1, 4):
        a(f"v_fma_f32 v9, v{R0+16*w+13}, v{R0+16*w+12}, v9")
    a("v_rcp_f32 v9, v9")
    for w in range(4):
        a(f"v_mul_f32 v{R0+16*w+12}, v{R0+16*w+12}, v9")
    a("s_waitcnt lgkmcnt(0)")
    for w in range(4):
        for k in range(10):
            if w == 0: a(f"v_mul_f32 v{R0+k}, v{R0+k}, v{R0+12}")
            else: a(f"v_fma_f32 v{R0+k}, v{R0+16*w+k}, v{R0+16*w+12}, v{R0+k}")
    for k in range(5):
        a(f"v_cvt_pk_bf16_f32 v{R0+16+k}, v{R0+2*k}, v{R0+2*k+1}")
    a(f"""
    buffer_store_dwordx4 v[{R0+16}:{R0+19}], v{V_L16}, s[{S_WS}:{S_WS+3}], s35 offen
    s_mov_b32 exec_hi, 0
    buffer_store_dword v{R0+20}, v{V_L16}, s[{S_WS}:{S_WS+3}], s34 offen
    """)
    stm.end(a, S_WS, S_WAVE, 1)
    a("s_endpgm")

G_ACC = 72
G_AR = 40
G_B = 24
G_NB, G_LA = 8, int(os.environ.get("GLA", 7))
G_RB0, G_RB1, G_DMA = 2, 3, 4
GS_DO, GS_BO, GS_M0, GS_CNT, GS_PO = 21, 22, 23, 24, 25
GS_D0, GS_DE, GS_B0, GS_BE = 26, 27, 28, 29
GSTG = 12288; GR = 4

def g_rd(a, m):
    mm = m % 48
    st, r = mm // 12, mm % 12
    ksl, nt = r // 6, r % 6
    buf = G_AR + 4 * (m % G_NB)
    va = G_RB0 if nt % 2 == 0 else G_RB1
    off = st * GSTG + (nt // 2) * 4096 + ksl * 2048
    a.lds(f"ds_read_b64_tr_b16 v[{buf}:{buf+1}], v{va} offset:{off}", ("A", m % G_NB))
    a.lds(f"ds_read_b64_tr_b16 v[{buf+2}:{buf+3}], v{va} offset:{off+1024}", ("A", m % G_NB))
def g_dma(a, slot, tok):
    items = []
    for c in range(3):
        def f(c=c):
            a(f"s_add_u32 m0, s{GS_M0}, {slot*GSTG + c*4096 - c*128}")
            a.vmem(f"buffer_load_dwordx4 v{G_DMA}, s[{S_WD}:{S_WD+3}], s{GS_DO} offen offset:{c*128} lds", tok)
            if c == 2: a(f"s_add_u32 s{GS_DO}, s{GS_DO}, {32*1152}\ns_cmp_eq_u32 s{GS_DO}, s{GS_DE}\ns_cselect_b32 s{GS_DO}, s{GS_D0}, s{GS_DO}")
        items.append(f)
    return items
def g_bload(a, k):
    b = G_B + 4 * (k % 4)
    a.vmem(f"buffer_load_dwordx4 v[{b}:{b+3}], v{V_L16}, s[{S_WS}:{S_WS+3}], s{GS_BO} offen", ("B", k % 4))
    a(f"s_add_u32 s{GS_BO}, s{GS_BO}, 1024\ns_cmp_eq_u32 s{GS_BO}, s{GS_BE}\ns_cselect_b32 s{GS_BO}, s{GS_B0}, s{GS_BO}")
def g_body(a):
    if "g" in ABL2:
        sv = a.vmem; a.vmem = lambda text, tok=None: None
        a("s_waitcnt vmcnt(0)"); a.vm = []
        try: g_body2(a)
        finally: a.vmem = sv
    else: g_body2(a)
def g_body2(a):
    pend = []
    for m in range(48):
        st, r = m // 12, m % 12
        ksl, nt = r // 6, r % 6
        k = st * 2 + ksl
        a.wait_lg(("A", m % G_NB))
        if nt == 0: a.wait_vm(("B", k % 4))
        buf = G_AR + 4 * (m % G_NB); b = G_B + 4 * (k % 4); d = G_ACC + 16 * nt
        a(f"v_mfma_f32_32x32x16_bf16 v[{d}:{d+15}], v[{buf}:{buf+3}], v[{b}:{b+3}], v[{d}:{d+15}]")
        nm = m + G_LA
        if nm % 12 == 0:
            ns = (nm // 12) % 4
            a.wait_vm(("W", ns))
            a("s_barrier")
            pend += g_dma(a, (ns + 2) % 4, ("W", (ns + 2) % 4))
        g_rd(a, nm)
        if pend: pend.pop(0)()
        if nt == 5: g_bload(a, k)
        if r == 11:
            a(f"s_sub_u32 s{GS_CNT}, s{GS_CNT}, 1\ns_cmp_eq_u32 s{GS_CNT}, 0\ns_cbranch_scc1 L2_GE")
    assert not pend

def gen_gemm2(a):
    a(f"""
    s_setprio 3
    s_and_b32 s34, s2, 7
    s_lshr_b32 s35, s2, 3              ; 0..29
    s_mul_i32 s36, s35, 43
    s_lshr_b32 s36, s36, 7             ; /3 -> 0..9
    s_mul_i32 s37, s36, 3
    s_sub_u32 s37, s35, s37            ; nb 0..2
    s_mul_i32 s40, s36, 3
    s_mul_i32 s41, s37, 10
    s_add_u32 s40, s40, s41            ; rotation (0..47)
    s_cmp_ge_u32 s40, 28
    s_cselect_b32 s41, 28, 0
    s_sub_u32 s40, s40, s41
    s_mul_i32 s40, s40, {GROT}
    s_mul_i32 s34, s34, 10
    s_add_u32 s34, s34, s36            ; combo 0..79
    s_lshr_b32 s35, s34, 4
    s_and_b32 s34, s34, 15             ; mt
    s_lshl_b32 s34, s34, 2
    s_add_u32 s34, s34, s{S_WAVE}      ; T
    s_mul_i32 s36, s35, 29
    s_cmp_eq_u32 s35, 4
    s_cselect_b32 s{GS_CNT}, 28, 29
    s_mul_i32 s{GS_BO}, s34, 288
    s_lshl_b32 s38, s36, 1
    s_add_u32 s{GS_BO}, s{GS_BO}, s38
    s_lshl_b32 s{GS_BO}, s{GS_BO}, 10
    s_lshl_b32 s38, s36, 2
    s_add_u32 s38, s38, s{S_WAVE}
    s_mul_i32 s{GS_DO}, s38, {8*1152}
    s_mul_i32 s38, s37, 384
    s_add_u32 s{GS_DO}, s{GS_DO}, s38
    s_lshl_b32 s{GS_M0}, s{S_WAVE}, 10
    s_mov_b32 s{GS_D0}, s{GS_DO}
    s_mov_b32 s{GS_B0}, s{GS_BO}
    s_mul_i32 s38, s{GS_CNT}, {32*1152}
    s_add_u32 s{GS_DE}, s{GS_D0}, s38
    s_lshl_b32 s38, s{GS_CNT}, 11
    s_add_u32 s{GS_BE}, s{GS_B0}, s38
    s_mul_i32 s38, s40, {32*1152}
    s_add_u32 s{GS_DO}, s{GS_DO}, s38
    s_lshl_b32 s38, s40, 11
    s_add_u32 s{GS_BO}, s{GS_BO}, s38
    s_lshl_b32 s38, s35, 6
    s_add_u32 s38, s38, s34
    s_mul_i32 s38, s38, 18
    s_mul_i32 s39, s37, 6
    s_add_u32 s38, s38, s39
    s_lshl_b32 s{GS_PO}, s38, 11
    s_add_u32 s{GS_PO}, s{GS_PO}, {WS_P}
    v_lshlrev_b32 v{V_L16}, 4, v0
    v_lshrrev_b32 v9, 3, v0
    v_and_b32 v10, 7, v0
    v_lshlrev_b32 v12, 1, v9
    v_and_b32 v12, 4, v12
    v_xor_b32 v12, v12, v10
    v_lshlrev_b32 v12, 4, v12
    v_mul_u32_u24 v{G_DMA}, 1152, v9
    v_add_u32 v{G_DMA}, v{G_DMA}, v12
    v_and_b32 v13, 15, v0
    v_lshrrev_b32 v14, 2, v13       ; r
    v_and_b32 v13, 3, v13           ; c
    v_lshrrev_b32 v15, 5, v0        ; hf
    v_lshl_add_u32 v15, v15, 2, v14 ; 4hf + r
    v_lshlrev_b32 v15, 7, v15
    v_lshl_add_u32 v15, v13, 3, v15
    v_and_b32 v13, 16, v0
    v_lshl_add_u32 v15, v13, 1, v15
    v_and_b32 v14, 2, v14
    v_lshl_add_u32 v{G_RB0}, v14, 5, v15
    v_xor_b32 v{G_RB1}, 64, v{G_RB0}
    """)
    a("s_waitcnt lgkmcnt(0)")
    srd(a, S_WS, 48, WS_SIZE)
    srd(a, S_WD, 50, 4608 * 1152)
    a.vm = []; a.lg = []
    pos = (12 - G_LA % 12) % 12
    ev = sorted([(pos + c, 0, c) for c in range(3)] + [(5, 1, 0), (11, 1, 1)])
    assert pos + 2 <= 11
    for f in g_dma(a, 0, ("W", 0)): f()
    for st in (1, 2):
        items = g_dma(a, st, ("W", st))
        for (_, kind, c) in ev:
            if kind == 0: items[c]()
            else: g_bload(a, 2 * st - 2 + c)
    for k in range(4): a(f"v_mov_b32 v{8+k}, 0")
    for k in range(6): a(f"v_mfma_f32_32x32x16_bf16 v[{G_ACC+16*k}:{G_ACC+16*k+15}], v[8:11], v[8:11], 0")
    a.wait_vm(("W", 0))
    a("s_barrier")
    for m in range(G_LA): g_rd(a, m)
    a(f"s_setprio {PG}")
    stm.stamp(a, 2)
    a.label("L2_GL")
    n0 = len(a.ins)
    g_body(a)
    txt1 = [x.text for x in a.ins[n0:]]
    b2 = Asm(); b2.vm = list(a.vm); b2.lg = list(a.lg); g_body(b2)
    txt2 = [x.text for x in b2.ins]
    if txt1 != txt2:
        for x, y in zip(txt1, txt2):
            if x != y: print("G steady mismatch:", x, "|", y)
        raise SystemExit(1)
    a("s_branch L2_GL")
    a.label("L2_GE")
    stm.stamp(a, 3)
    a("s_setprio 3")
    if TOUCH:
        a(f"""
        s_lshr_b32 s34, s2, 3
        s_lshl_b32 s34, s34, 2
        s_add_u32 s34, s34, s{S_WAVE}
        s_mul_i32 s34, s34, {44*128}
        s_add_u32 s34, s34, {WS_WO}
        v_lshlrev_b32 v8, 3, v{V_L16}
        s_mov_b32 exec_hi, 0xfff
        buffer_load_dword v9, v8, s[{S_WS}:{S_WS+3}], s34 offen
        s_mov_b32 exec_hi, -1
        """)
    for nt in range(6):
        d = G_ACC + 16 * nt
        for k in range(8): a(f"v_cvt_pk_bf16_f32 v{d+k}, v{d+2*k}, v{d+2*k+1}")
        for ch in range(2):
            a(f"buffer_store_dwordx4 v[{d+4*ch}:{d+4*ch+3}], v{V_L16}, s[{S_WS}:{S_WS+3}], s{GS_PO} offen offset:{(nt%2)*2048+ch*1024}{PFLAGS}")
        if nt % 2: a(f"s_add_u32 s{GS_PO}, s{GS_PO}, 4096")
    stm.end(a, S_WS, S_WAVE, 1)
    a("s_endpgm")

def gen_wo(a):
    a.label("L2_WO")
    a("s_waitcnt lgkmcnt(0)")
    srd(a, S_WS, 48, WS_SIZE)
    srd(a, S_WD, 52, 576 * 1152)
    a(f"""
    s_sub_u32 s34, s2, 240
    s_mul_i32 s35, s34, {36*1152}
    s_lshl_b32 s36, s{S_WAVE}, 10
    s_add_u32 s35, s35, s36
    v_lshlrev_b32 v{V_L16}, 4, v0
    """)
    for i in range(11):
        a(f"s_add_u32 m0, s36, {i*4096}")
        a(f"buffer_load_dwordx4 v{V_L16}, s[{S_WD}:{S_WD+3}], s35 offen lds")
        a(f"s_add_u32 s35, s35, 4096")
    a(f"""
    v_and_b32 v13, 15, v0
    v_lshrrev_b32 v14, 2, v13       ; r
    v_and_b32 v13, 3, v13           ; c
    v_lshrrev_b32 v15, 5, v0        ; hf
    v_lshl_add_u32 v16, v15, 2, v14 ; 4hf + r
    v_mul_u32_u24 v16, 1152, v16
    v_lshlrev_b32 v13, 3, v13
    v_and_b32 v17, 16, v0
    v_lshl_add_u32 v13, v17, 1, v13
    v_add_u32 v16, v16, v13
    v_lshrrev_b32 v17, 1, v14
    v_mul_u32_u24 v17, 18, v17
    v_and_b32 v18, 1, v14
    v_add3_u32 v17, v17, v18, 16
    v_mul_u32_u24 v17, 1152, v17
    v_add_u32 v17, v17, v13
    s_lshl_b32 s37, s{S_WAVE}, 6
    v_add_u32 v16, s37, v16
    v_add_u32 v17, s37, v17
    s_mul_i32 s38, s{S_WAVE}, {36*1024}
    s_add_u32 s38, s38, {WS_WO}
    s_lshl_b32 s39, s34, 11
    s_add_u32 s39, s39, s38
    s_lshr_b32 s40, s34, 1           ; h>>2
    s_lshl_b32 s40, s40, 9
    s_add_u32 s40, s40, s38
    s_and_b32 s41, s34, 1
    s_lshl_b32 s41, s41, 3
    s_add_u32 s40, s40, s41
    s_add_u32 s40, s40, {32*1024}
    v_and_b32 v18, 31, v0
    v_lshlrev_b32 v18, 4, v18
    s_waitcnt vmcnt(0)
    s_barrier
    """)
    for it in range(5):
        if it == 4:
            a(f"s_cmp_ge_u32 s{S_WAVE}, 2\ns_cbranch_scc1 L2_END")
        for hh in range(2):
            a(f"ds_read_b64_tr_b16 v[{20+4*hh}:{21+4*hh}], v16 offset:{it*256 + hh*18*1152}")
            a(f"ds_read_b64_tr_b16 v[{22+4*hh}:{23+4*hh}], v16 offset:{it*256 + hh*18*1152 + 8*1152}")
        a(f"ds_read_b64_tr_b16 v[28:29], v17 offset:{it*256}")
        a("s_waitcnt lgkmcnt(0)")
        a(f"buffer_store_dwordx4 v[20:23], v{V_L16}, s[{S_WS}:{S_WS+3}], s39 offen")
        a(f"buffer_store_dwordx4 v[24:27], v{V_L16}, s[{S_WS}:{S_WS+3}], s39 offen offset:1024")
        a(f"buffer_store_dwordx2 v[28:29], v18, s[{S_WS}:{S_WS+3}], s40 offen")
        a(f"s_add_u32 s39, s39, {4*36*1024}\ns_add_u32 s40, s40, {4*36*1024}")
        a("s_waitcnt vmcnt(0)")
    a("s_endpgm")

def gen():
    a = Asm()
    a(f"s_cmp_ge_u32 s2, {NG+NA}\ns_cbranch_scc1 L2_END")
    if AFIRST == 2:
        a("s_cmp_lt_u32 s2, 512\ns_cselect_b32 s3, 256, 0\ns_xor_b32 s2, s2, s3")
    elif AFIRST:
        a(f"s_add_u32 s2, s2, {NG}\ns_cmp_ge_u32 s2, {NG+NA}\ns_cselect_b32 s3, {NG+NA}, 0\ns_sub_u32 s2, s2, s3")
    stm.begin(a)
    a("s_load_dwordx2 s[48:49], s[0:1], 80")
    a("s_load_dwordx2 s[50:51], s[0:1], 48")
    a("s_load_dwordx2 s[52:53], s[0:1], 16")
    a(f"v_lshrrev_b32 v8, 6, v0\nv_and_b32 v0, 63, v0\nv_readfirstlane_b32 s{S_WAVE}, v8")
    a(f"s_cmp_ge_u32 s2, {NG}\ns_cbranch_scc1 L2_ATT")
    a(f"s_cmp_ge_u32 s2, 240\ns_cbranch_scc1 L2_WO")
    gen_gemm2(a)
    gen_wo(a)
    gen_attn(a)
    a.label("L2_END")
    a("s_endpgm")
    n = a.fix()
    return a, n
if __name__ == "__main__":
    a, n = gen()
    print("nops", n, "instrs", len(a.ins))
```

```python
from asmlib import *
from layout import *
import stamp as stm
import os, re
AROT = int(os.environ.get("AROT", 1)); GROT = int(os.environ.get("GROT", 0))
PFLAGS = os.environ.get("PFLAGS", "")
BBASE = 3 * 24576
LDS_L2 = BBASE + 65536
S_WS, S_WD = 4, 8
S_WAVE = 20
V_L16, V_KR, V_V = 1, 2, 3
V_M = 4
V_GRB, V_GRA, V_GD, V_BR = 8, 9, 10, 11
QM, QR, OA, SB, PB, KV = 12, 28, 44, 96, 128, 136
GA, GR, GB = 168, 216, 240
GNB, GLA = 6, 5
S_KM, S_KE, S_V, S_KM0, S_VE, S_V0 = 21, 22, 23, 24, 25, 26
S_CNT, S_NMAX, S_GN = 27, 28, 29
S_VM = 30
S_H, S_QT = 32, 33
S_DO, S_D1, S_BO, S_BM, S_M0, S_RS, S_WSL, S_PO = 36, 37, 39, 40, 42, 43, 44, 45
GSTG = 24576

def srd(a, d, src, nbytes):
    a(f"s_mov_b32 s{d}, s{src}\ns_mov_b32 s{d+1}, s{src+1}\ns_mov_b32 s{d+2}, {nbytes}\ns_mov_b32 s{d+3}, 0x00020000")
def oacc(i): return f"v[{OA+12*i}:{OA+12*i+15}]"
def kmain(b): return f"v[{KV+16*b}:{KV+16*b+3}]"
def krem(b): return f"v[{KV+16*b+4}:{KV+16*b+7}]"
def vfr(b, j): return f"v[{KV+16*b+8+4*j}:{KV+16*b+11+4*j}]"
def sbuf(s): return f"v[{SB+16*s}:{SB+16*s+15}]"
LDF = os.environ.get("LDF", "")
ABL = os.environ.get("ABL3", "")
INLOOP = [False]
def load_k(a, b, tok):
    if "k" in ABL and INLOOP[0]: return
    a.vmem(f"buffer_load_dwordx4 {kmain(b)}, v{V_L16}, s[{S_WS}:{S_WS+3}], s{S_KM} offen{LDF}", tok)
    a.vmem(f"buffer_load_dword v{KV+16*b+4}, v{V_KR}, s[{S_WS}:{S_WS+3}], s{S_KM} offen offset:1024{LDF}", tok)
    a(f"s_add_u32 s{S_KM}, s{S_KM}, 1536\ns_cmp_eq_u32 s{S_KM}, s{S_KE}\ns_cselect_b32 s{S_KM}, s{S_KM0}, s{S_KM}")
def load_v(a, b, tok):
    if "k" in ABL and INLOOP[0]: return
    a(f"s_mov_b64 exec, s[{S_VM}:{S_VM+1}]")
    a.vmem(f"buffer_load_dwordx4 {vfr(b,0)}, v{V_V}, s[{S_WS}:{S_WS+3}], s{S_V} offen{LDF}", tok)
    a.vmem(f"buffer_load_dwordx4 {vfr(b,1)}, v{V_V}, s[{S_WS}:{S_WS+3}], s{S_V} offen offset:640{LDF}", tok)
    a(f"s_mov_b64 exec, -1")
    a(f"s_add_u32 s{S_V}, s{S_V}, 1280\ns_cmp_eq_u32 s{S_V}, s{S_VE}\ns_cselect_b32 s{S_V}, s{S_V0}, s{S_V}")
def qk1(a, s, b, i): a(f"v_mfma_f32_32x32x16_bf16 {sbuf(s)}, {kmain(b)}, v[{QM+4*i}:{QM+4*i+3}], 0")
def qk2(a, s, b, i): a(f"v_mfma_f32_32x32x16_bf16 {sbuf(s)}, {krem(b)}, v[{QR+4*i}:{QR+4*i+3}], {sbuf(s)}")
def pv(a, b, i, j): a(f"v_mfma_f32_32x32x16_bf16 {oacc(i)}, {vfr(b,j)}, v[{PB+4*j}:{PB+4*j+3}], {oacc(i)}")

def g_rd(a, m):
    if "r" in ABL and INLOOP[0]: return
    mm = m % 24
    ks, nt = mm // 3, mm % 3
    buf = GR + 4 * (m % GNB)
    off = ks * 3072 + nt * 1024
    a.lds(f"ds_read_b64_tr_b16 v[{buf}:{buf+1}], v{V_GRA} offset:{off}", ("A", m % GNB))
    a.lds(f"ds_read_b64_tr_b16 v[{buf+2}:{buf+3}], v{V_GRA} offset:{off+512}", ("A", m % GNB))
def ring(a, s): a(f"s_add_u32 s{s}, s{s}, {GSTG}\ns_cmp_eq_u32 s{s}, {3*GSTG}\ns_cselect_b32 s{s}, 0, s{s}")
def g_dma(a, c, tok="W"):
    if "w" in ABL and INLOOP[0]: return
    if c == 0: a(f"s_add_u32 m0, s{S_WSL}, s{S_M0}")
    else: a(f"s_add_u32 m0, s{S_WSL}, s{S_M0}\ns_add_u32 m0, m0, {c*(1024-64)}")
    a.vmem(f"buffer_load_dwordx4 v{V_GD}, s[{S_WD}:{S_WD+3}], s{S_DO} offen offset:{c*64} lds", tok)
    if c == 2:
        a(f"s_mov_b32 s{S_DO}, s{S_D1}\ns_add_u32 s{S_D1}, s{S_D1}, {128*1152}")
        ring(a, S_WSL)
def b_dma(a, t):
    if "b" in ABL and INLOOP[0]: return
    a(f"s_add_u32 m0, s{S_BM}, {t*1024}")
    a.vmem(f"buffer_load_dwordx4 v{V_L16}, s[{S_WS}:{S_WS+3}], s{S_BO} offen lds{LDF}", ("B", t))
    a(f"s_add_u32 s{S_BO}, s{S_BO}, 1024")
def b_rd(a, t):
    a.wait_vm(("B", t))
    b = GB + 4 * (t % 2)
    a.lds(f"ds_read_b128 v[{b}:{b+3}], v{V_BR} offset:{t*1024}", ("b", t % 2))
def g_open(a, tok="W"):
    a.wait_vm(tok)
    if not ("s" in ABL and INLOOP[0]): a("s_barrier")
    a(f"v_add_u32 v{V_GRA}, s{S_RS}, v{V_GRB}")
    ring(a, S_RS)

def body(a, mode):
    pend = []
    def g(t, nt):
        if mode == 0: return
        m = 3 * t + nt
        if mode == 2 and t < 6:
            if m < 3: g_dma(a, m, "W0")
            elif m < 5: b_dma(a, 6 + m - 3)
            elif m < 8: g_dma(a, m - 5)
            elif m < 14: b_dma(a, m - 8)
            if m == 18 - GLA: g_open(a, "W0")
            if m >= 18 - GLA: g_rd(a, m + GLA)
            if m == 16: b_rd(a, 6)
            return
        a.wait_lg(("A", m % GNB))
        if nt == 0: a.wait_lg(("b", t % 2))
        buf = GR + 4 * (m % GNB); b = GB + 4 * (t % 2); d = GA + 16 * nt
        a(f"v_mfma_f32_32x32x16_bf16 v[{d}:{d+15}], v[{buf}:{buf+3}], v[{b}:{b+3}], v[{d}:{d+15}]")
        nm = m + GLA
        if nm == 24:
            g_open(a); pend.extend([0, 1, 2])
        g_rd(a, nm)
        if nt == 0: b_dma(a, t)
        elif pend: g_dma(a, pend.pop(0))
        if nt == 1: b_rd(a, (t + 1) % 8)
    for t in range(8):
        b, i, s = t // 4, t % 4, t % 2
        S = SB + 16 * s
        e = lambda k: a(f"v_exp_f32 v{S+k}, v{S+k}")
        c = lambda k: a(f"v_cvt_pk_bf16_f32 v{PB+k}, v{S+2*k}, v{S+2*k+1}")
        pb, pi = ((t - 1) % 8) // 4, (t - 1) % 4
        nb, ni = ((t + 1) % 8) // 4, (t + 1) % 4
        e(0); e(1)
        pv(a, pb, pi, 1)
        if i == 0: load_v(a, 1 - b, ("V", 1 - b))
        e(2); e(3); c(0)
        g(t, 0)
        e(4); e(5); c(1)
        if ni == 0: a.wait_vm(("K", nb))
        qk1(a, 1 - s, nb, ni)
        e(6); e(7); c(2)
        qk2(a, 1 - s, nb, ni)
        if ni == 3: load_k(a, nb, ("K", nb))
        e(8); e(9); c(3)
        g(t, 1)
        e(10); e(11); c(4)
        if i == 0: a.wait_vm(("V", b))
        pv(a, b, i, 0)
        e(12); e(13); c(5)
        g(t, 2)
        e(14); e(15); c(6); c(7)
    assert not pend

def cnt_of(x):
    m = re.search(r"(vmcnt|lgkmcnt)\((\d+)\)", x.text)
    return (m.group(1), int(m.group(2))) if x.op == "s_waitcnt" and m else None
def merge_waits(first, steady_):
    out = []; i = j = 0
    while i < len(first) or j < len(steady_):
        x = first[i] if i < len(first) else None; y = steady_[j] if j < len(steady_) else None
        cx = cnt_of(x) if x else None; cy = cnt_of(y) if y else None
        if x and y and x.text == y.text: out.append(y); i += 1; j += 1
        elif cx and cy and cx[0] == cy[0]: out.append(Ins(f"s_waitcnt {cx[0]}({min(cx[1], cy[1])})")); i += 1; j += 1
        elif cy: out.append(y); j += 1
        elif cx: out.append(x); i += 1
        else: raise RuntimeError((x.text, y.text))
    return out

def steady(a, mode, label, cnt):
    b1 = Asm(); b1.vm = list(a.vm); b1.lg = list(a.lg); body(b1, mode)
    b2 = Asm(); b2.vm = list(b1.vm); b2.lg = list(b1.lg); body(b2, mode)
    b3 = Asm(); b3.vm = list(b2.vm); b3.lg = list(b2.lg); body(b3, mode)
    assert [x.text for x in b2.ins] == [x.text for x in b3.ins]
    a.label(label)
    a.ins += merge_waits(b1.ins, b2.ins)
    a.vm = list(b2.vm); a.lg = list(b2.lg)
    a(f"s_sub_u32 s{cnt}, s{cnt}, 1\ns_cmp_lg_u32 s{cnt}, 0\ns_cbranch_scc1 {label}")

def max_tile(a, b):
    for i in range(4):
        qk1(a, i % 2, b, i); qk2(a, i % 2, b, i)
        if i > 0:
            S = SB + 16 * ((i - 1) % 2)
            for k in range(8): a(f"v_max3_f32 v{V_M+i-1}, v{S+2*k}, v{S+2*k+1}, v{V_M+i-1}")
    S = SB + 16
    for k in range(8): a(f"v_max3_f32 v{V_M+3}, v{S+2*k}, v{S+2*k+1}, v{V_M+3}")

def gen_wo(a):
    srd(a, S_WD, 52, 576 * 1152)
    T = GA
    a(f"""
    s_mul_i32 s34, s46, {36*1152}
    s_lshl_b32 s35, s{S_WAVE}, 10
    s_add_u32 s34, s34, s35
    """)
    for i in range(6):
        a(f"s_add_u32 m0, s35, {i*8192}")
        a(f"s_add_u32 s47, s34, {i*8192}")
        a(f"buffer_load_dwordx4 v{V_L16}, s[{S_WD}:{S_WD+3}], s47 offen lds")
    a(f"""
    v_and_b32 v{T}, 15, v0
    v_lshrrev_b32 v{T+1}, 2, v{T}       ; r
    v_and_b32 v{T}, 3, v{T}             ; c
    v_lshrrev_b32 v{T+2}, 5, v0         ; hf
    v_lshl_add_u32 v{T+3}, v{T+2}, 2, v{T+1}
    v_mul_u32_u24 v{T+3}, 1152, v{T+3}
    v_lshlrev_b32 v{T}, 3, v{T}
    v_and_b32 v{T+4}, 16, v0
    v_lshl_add_u32 v{T}, v{T+4}, 1, v{T}
    v_add_u32 v{T+3}, v{T+3}, v{T}
    v_lshrrev_b32 v{T+4}, 1, v{T+1}
    v_mul_u32_u24 v{T+4}, 18, v{T+4}
    v_and_b32 v{T+5}, 1, v{T+1}
    v_add3_u32 v{T+4}, v{T+4}, v{T+5}, 16
    v_mul_u32_u24 v{T+4}, 1152, v{T+4}
    v_add_u32 v{T+4}, v{T+4}, v{T}
    s_lshl_b32 s47, s{S_WAVE}, 6
    v_add_u32 v{T+3}, s47, v{T+3}
    v_add_u32 v{T+4}, s47, v{T+4}
    s_mul_i32 s34, s{S_WAVE}, {36*1024}
    s_add_u32 s34, s34, {WS_WO}
    s_lshl_b32 s35, s46, 11
    s_add_u32 s35, s35, s34
    s_lshr_b32 s47, s46, 1
    s_lshl_b32 s47, s47, 9
    s_add_u32 s34, s34, s47
    s_and_b32 s47, s46, 1
    s_lshl_b32 s47, s47, 3
    s_add_u32 s34, s34, s47
    s_add_u32 s34, s34, {32*1024}
    s_waitcnt vmcnt(0)
    s_barrier
    """)
    for it in range(3):
        if it == 2: a(f"s_cmp_ge_u32 s{S_WAVE}, 2\ns_cbranch_scc1 L2_WOD")
        D = T + 8 + 12 * it
        for hh in range(2):
            a(f"ds_read_b64_tr_b16 v[{D+4*hh}:{D+1+4*hh}], v{T+3} offset:{it*512 + hh*18*1152}")
            a(f"ds_read_b64_tr_b16 v[{D+2+4*hh}:{D+3+4*hh}], v{T+3} offset:{it*512 + hh*18*1152 + 8*1152}")
        a(f"ds_read_b64_tr_b16 v[{D+8}:{D+9}], v{T+4} offset:{it*512}")
        a("s_waitcnt lgkmcnt(0)")
        a(f"buffer_store_dwordx4 v[{D}:{D+3}], v{V_L16}, s[{S_WS}:{S_WS+3}], s35 offen")
        a(f"buffer_store_dwordx4 v[{D+4}:{D+7}], v{V_L16}, s[{S_WS}:{S_WS+3}], s35 offen offset:1024")
        a(f"buffer_store_dwordx2 v[{D+8}:{D+9}], v{V_KR}, s[{S_WS}:{S_WS+3}], s34 offen")
        a(f"s_add_u32 s35, s35, {8*36*1024}\ns_add_u32 s34, s34, {8*36*1024}")
    a.label("L2_WOD")

def gen():
    a = Asm()
    a(f"s_cmp_ge_u32 s2, 256\ns_cbranch_scc1 L2_END")
    stm.begin(a)
    a("s_load_dwordx2 s[48:49], s[0:1], 80")
    a("s_load_dwordx2 s[50:51], s[0:1], 48")
    a("s_load_dwordx2 s[52:53], s[0:1], 16")
    T = SB
    a(f"""
    v_lshrrev_b32 v{T}, 6, v0
    v_and_b32 v0, 63, v0
    v_readfirstlane_b32 s{S_WAVE}, v{T}
    s_and_b32 s54, s2, 7              ; xcd
    s_lshr_b32 s55, s2, 3             ; j 0..31
    s_lshr_b32 s34, s55, 3
    s_lshl_b32 s35, s54, 2
    s_add_u32 s{S_H}, s35, s34        ; head
    s_and_b32 s34, s55, 7             ; q block 256
    s_lshl_b32 s34, s34, 1
    s_lshr_b32 s35, s{S_WAVE}, 2
    s_add_u32 s56, s34, s35           ; q block 128 (0..15)
    s_lshl_b32 s{S_QT}, s56, 2
    s_and_b32 s57, s{S_WAVE}, 3
    v_lshlrev_b32 v{V_L16}, 4, v0
    v_and_b32 v{T}, 31, v0
    v_lshlrev_b32 v{V_KR}, 4, v{T}
    v_lshrrev_b32 v{T+1}, 5, v0
    v_mul_u32_u24 v{T+2}, 320, v{T+1}
    v_add_u32 v{V_V}, v{T+2}, v{V_KR}
    s_mov_b32 s{S_VM}, 0x3ffff
    s_mov_b32 s{S_VM+1}, 0x3ffff
    s_mul_i32 s34, s{S_H}, {QK_HS}
    s_mul_i32 s35, s56, {4*1536}
    s_add_u32 s35, s35, s34
    s_add_u32 s58, s35, {WS_Q}
    s_add_u32 s59, s58, {2*1536}
    s_mul_i32 s35, s57, {16*1536}
    s_add_u32 s{S_KM0}, s34, s35
    s_add_u32 s{S_KM0}, s{S_KM0}, {WS_K}
    s_lshl_b32 s34, s{S_H}, 6
    s_lshl_b32 s35, s57, 4
    s_add_u32 s34, s34, s35
    s_mul_i32 s{S_V0}, s34, 1280
    s_add_u32 s{S_V0}, s{S_V0}, {WS_V}
    s_mov_b32 s{S_NMAX}, 1
    s_add_u32 s{S_KE}, s{S_KM0}, {16*1536}
    s_add_u32 s{S_VE}, s{S_V0}, {16*1280}
    s_mul_i32 s{S_KM}, s56, {1536*AROT}
    s_add_u32 s{S_KM}, s{S_KM}, s{S_KM0}
    s_mul_i32 s{S_V}, s56, {1280*AROT}
    s_add_u32 s{S_V}, s{S_V}, s{S_V0}
    v_cmp_eq_u32 vcc, 18, v{T}
    v_mov_b32 v{T+2}, 0x3f803f80
    v_cndmask_b32 v{T+3}, 0, v{T+2}, vcc
    """)
    for k in range(8): a(f"v_mov_b32 v{KV+8+k}, v{T+3}")
    for i in range(4): a(f"v_mov_b32 v{QR+4*i}, 0")
    a("s_waitcnt lgkmcnt(0)")
    srd(a, S_WS, 48, WS_SIZE)
    load_k(a, 0, ("K", 0))
    for i in range(4):
        so = 58 if i < 2 else 59
        a.vmem(f"buffer_load_dwordx4 v[{QM+4*i}:{QM+4*i+3}], v{V_L16}, s[{S_WS}:{S_WS+3}], s{so} offen offset:{1536*(i%2)}{LDF}", "Q")
    a("s_mov_b32 exec_hi, 0")
    for i in range(4):
        so = 58 if i < 2 else 59
        a.vmem(f"buffer_load_dword v{QR+4*i}, v{V_KR}, s[{S_WS}:{S_WS+3}], s{so} offen offset:{1536*(i%2)+1024}{LDF}", "Q")
    load_v(a, 0, ("V", 0))
    load_k(a, 1, ("K", 1))
    for b in range(2):
        a(f"v_mov_b32 v{KV+16*b+5}, v{T+2}\nv_mov_b32 v{KV+16*b+6}, 0\nv_mov_b32 v{KV+16*b+7}, 0")
    for k in range(8): a(f"v_mov_b32 v{KV+16+8+k}, v{T+3}")
    for i in range(4):
        a(f"v_mov_b32 v{QR+4*i+1}, 0\nv_mov_b32 v{QR+4*i+2}, 0\nv_mov_b32 v{QR+4*i+3}, 0\nv_mov_b32 v{V_M+i}, 0xff800000")
    for k in range(4, 8): a(f"v_mov_b32 v{PB+k}, 0")
    for k in range(4): a(f"v_mov_b32 v{OA+48+k}, 0")
    for k in range(3): a(f"v_mfma_f32_32x32x16_bf16 v[{OA+16*k}:{OA+16*k+15}], v[{PB+4}:{PB+7}], v[{PB+4}:{PB+7}], 0")
    a(f"""
    v_lshrrev_b32 v{T+4}, 2, v0
    v_mul_u32_u24 v{T+4}, 1152, v{T+4}
    v_and_b32 v{T+5}, 3, v0
    v_lshl_add_u32 v{V_GD}, v{T+5}, 4, v{T+4}
    v_bfe_u32 v{T+4}, v0, 2, 2            ; r
    v_lshl_add_u32 v{T+4}, v{T+1}, 2, v{T+4}
    v_lshlrev_b32 v{T+4}, 6, v{T+4}
    v_lshl_add_u32 v{T+4}, v{T+5}, 3, v{T+4}
    v_and_b32 v{T+5}, 16, v0
    v_lshl_add_u32 v{V_GRB}, v{T+5}, 1, v{T+4}
    s_lshl_b32 s{S_BM}, s{S_WAVE}, 13
    s_add_u32 s{S_BM}, s{S_BM}, {BBASE}
    v_add_u32 v{V_BR}, s{S_BM}, v{V_L16}
    """)
    a(f"s_mov_b32 s{S_GN}, 0\ns_cmp_lt_u32 s55, 30\ns_cbranch_scc1 L2_GS")
    a("s_lshl_b32 s46, s54, 1\ns_add_u32 s46, s46, s55\ns_sub_u32 s46, s46, 30")
    vm_save = list(a.vm)
    gen_wo(a)
    a("s_branch L2_GD")
    a.label("L2_GS")
    srd(a, S_WD, 50, 4608 * 1152)
    a(f"""
    s_mul_i32 s34, s55, 43
    s_lshr_b32 s34, s34, 8             ; j/6 -> 0..4
    s_mul_i32 s35, s34, 6
    s_sub_u32 s35, s55, s35            ; nb 0..5
    s_mul_i32 s46, s54, 5
    s_add_u32 s46, s46, s34            ; combo 0..39
    s_lshr_b32 s47, s46, 3
    s_and_b32 s46, s46, 7              ; mt
    s_lshl_b32 s46, s46, 3
    s_add_u32 s46, s46, s{S_WAVE}      ; T
    s_mul_i32 s56, s47, 58
    s_mov_b32 s{S_GN}, 7
    ; B: (T*288 + k0 - 2)*1024
    s_mul_i32 s{S_BO}, s46, 288
    s_add_u32 s{S_BO}, s{S_BO}, s56
    s_sub_u32 s{S_BO}, s{S_BO}, 2
    s_lshl_b32 s{S_BO}, s{S_BO}, 10
    s_add_u32 s57, s56, s{S_WAVE}
    s_mul_i32 s{S_D1}, s57, {16*1152}
    s_mul_i32 s57, s35, 192
    s_add_u32 s{S_D1}, s{S_D1}, s57
    s_sub_u32 s{S_DO}, s{S_D1}, {128*1152}
    s_cmp_lt_u32 s{S_WAVE}, 6
    s_cselect_b32 s{S_DO}, 0x80000000, s{S_DO}
    s_cmp_eq_u32 s47, 0
    s_cselect_b32 s{S_DO}, 0x80000000, s{S_DO}
    s_mul_i32 s{S_M0}, s{S_WAVE}, 3072
    s_mov_b32 s{S_RS}, 0
    s_mov_b32 s{S_WSL}, 0
    s_lshl_b32 s57, s47, 6
    s_add_u32 s57, s57, s46
    s_mul_i32 s57, s57, 18
    s_mul_i32 s56, s35, 3
    s_add_u32 s57, s57, s56
    s_lshl_b32 s{S_PO}, s57, 11
    s_add_u32 s{S_PO}, s{S_PO}, {WS_P}
    """)
    for k in range(3): a(f"v_mfma_f32_32x32x16_bf16 v[{GA+16*k}:{GA+16*k+15}], v[{PB+4}:{PB+7}], v[{PB+4}:{PB+7}], 0")
    stm.stamp(a, 1)
    a.vm = vm_save
    a.wait_vm("Q")
    a.label("L2_GD")
    stm.stamp(a, 4)
    max_tile(a, 0)
    a("v_cmp_gt_u32 vcc, 32, v0")
    for i in range(4):
        m = V_M + i
        a(f"""
        v_and_b32 v{m}, 0xffff0000, v{m}
        v_lshrrev_b32 v{PB}, 16, v{m}
        v_xor_b32 v{PB}, 0x8000, v{PB}
        v_cndmask_b32 v{QR+4*i+1}, 0, v{PB}, vcc
        """)
    a.label("L2_GO")
    qk1(a, 0, 0, 0); qk2(a, 0, 0, 0)
    stm.stamp(a, 2)
    a(f"s_cmp_lg_u32 s{S_GN}, 0\ns_cbranch_scc1 L2_T")
    a(f"s_mov_b32 s{S_CNT}, 8")
    vm_save = list(a.vm)
    steady(a, 0, "L2_LA", S_CNT)
    a("s_branch L2_FIN")
    a.label("L2_T")
    a.vm = vm_save; a.lg = []
    body(a, 2)
    INLOOP[0] = True
    steady(a, 1, "L2_LG", S_GN)
    INLOOP[0] = False
    a("s_waitcnt lgkmcnt(0)")
    for nt in range(3):
        d = GA + 16 * nt
        for k in range(8): a(f"v_cvt_pk_bf16_f32 v{d+k}, v{d+2*k}, v{d+2*k+1}")
        for ch in range(2):
            a(f"buffer_store_dwordx4 v[{d+4*ch}:{d+4*ch+3}], v{V_L16}, s[{S_WS}:{S_WS+3}], s{S_PO} offen offset:{ch*1024}{PFLAGS}")
        a(f"s_add_u32 s{S_PO}, s{S_PO}, 2048")
    a.label("L2_FIN")
    pv(a, 1, 3, 1)
    stm.stamp(a, 3)
    a("v_mov_b32 v8, 0\nv_mov_b32 v9, 0")
    a(f"""
    s_mul_i32 s46, s{S_WAVE}, {4*3328}
    v_add_u32 v{PB}, s46, v{V_L16}
    v_lshlrev_b32 v{PB+1}, 2, v0
    v_add_u32 v{PB+1}, s46, v{PB+1}
    """)
    for i in range(4):
        for k in range(0, 12, 2):
            a(f"v_pk_fma_f32 v[8:9], v[{OA+12*i+k}:{OA+12*i+k+1}], 0, v[8:9]")
    a(f"""
    v_add_f32 v8, v8, v9
    v_min_f32 v9, v{OA+10}, v{OA+22}
    v_min3_f32 v9, v{OA+34}, v{OA+46}, v9
    v_max_f32 v10, v{OA+10}, v{OA+22}
    v_max3_f32 v10, v{OA+34}, v{OA+46}, v10
    v_cmp_eq_f32 s[34:35], 0, v8
    v_cmp_lt_f32 vcc, {hex(f2u(2.0**-30))}, v9
    s_or_b32 vcc_hi, vcc_hi, -1
    s_and_b64 s[34:35], s[34:35], vcc
    v_cmp_gt_f32 vcc, {hex(f2u(2.0**30))}, v10
    s_and_b64 s[34:35], s[34:35], vcc
    s_cmp_eq_u64 s[34:35], -1
    s_cbranch_scc1 L2_AOK
    s_cmp_eq_u32 s{S_NMAX}, 16
    s_cbranch_scc1 L2_AOK
    """)
    a(f"s_mov_b32 s{S_NMAX}, 16\ns_mov_b32 s{S_KM}, s{S_KM0}\ns_mov_b32 s{S_CNT}, 16\ns_waitcnt vmcnt(0)")
    for i in range(4):
        a(f"v_mov_b32 v{QR+4*i+1}, 0\nv_mov_b32 v{V_M+i}, 0xff800000")
    a.label("L2_MAXL")
    a.vm = []
    load_k(a, 0, "k")
    a.wait_vm("k")
    max_tile(a, 0)
    a(f"s_sub_u32 s{S_CNT}, s{S_CNT}, 1\ns_cmp_lg_u32 s{S_CNT}, 0\ns_cbranch_scc1 L2_MAXL")
    a(f"s_mov_b32 s{S_KM}, s{S_KM0}\ns_mov_b32 s{S_V}, s{S_V0}")
    load_k(a, 0, None); load_v(a, 0, None); load_k(a, 1, None)
    for k in range(4, 8): a(f"v_mov_b32 v{PB+k}, 0")
    a("v_cmp_gt_u32 vcc, 32, v0")
    for i in range(4):
        m = V_M + i
        a(f"""
        v_mov_b32 v8, v{m}
        v_mov_b32 v9, v{m}
        v_mfma_f32_32x32x16_bf16 {oacc(i)}, v[{PB+4}:{PB+7}], v[{PB+4}:{PB+7}], 0
        v_permlane32_swap_b32 v8, v9
        v_max_f32 v{m}, v8, v9
        v_sub_f32 v8, 0, v{m}
        v_and_b32 v9, 0xffff0000, v8
        v_sub_f32 v8, v8, v9
        v_and_b32 v10, 0xffff0000, v8
        v_sub_f32 v8, v8, v10
        v_lshrrev_b32 v9, 16, v9
        v_or_b32 v9, v9, v10
        v_lshrrev_b32 v8, 16, v8
        v_cndmask_b32 v{QR+4*i+1}, v8, v9, vcc
        """)
    a("s_waitcnt vmcnt(0)\ns_branch L2_GO")
    a.label("L2_AOK")
    a("s_waitcnt vmcnt(0)\ns_barrier")
    for i in range(4):
        for ch in range(3):
            a(f"ds_write_b128 v{PB}, v[{OA+12*i+4*ch}:{OA+12*i+4*ch+3}] offset:{i*3328+ch*1024}")
        a(f"ds_write_b32 v{PB+1}, v{V_M+i} offset:{i*3328+3072}")
    a(f"""
    s_and_b32 s34, s{S_WAVE}, 3
    s_mul_i32 s35, s34, 3328
    s_lshr_b32 s46, s{S_WAVE}, 2
    s_mul_i32 s46, s46, {16*3328}
    s_add_u32 s35, s35, s46
    v_add_u32 v8, s35, v{V_L16}
    v_lshrrev_b32 v9, 2, v{V_KR}
    v_add_u32 v9, s35, v9
    v_add_u32 v10, s35, v{V_KR}
    s_add_u32 s34, s34, s{S_QT}
    s_mul_i32 s34, s34, {36*1024}
    s_add_u32 s34, s34, {WS_O}
    s_lshl_b32 s35, s{S_H}, 10
    s_add_u32 s35, s35, s34
    s_lshr_b32 s46, s{S_H}, 2
    s_lshl_b32 s46, s46, 9
    s_add_u32 s34, s34, s46
    s_and_b32 s46, s{S_H}, 3
    s_lshl_b32 s46, s46, 2
    s_add_u32 s34, s34, s46
    s_add_u32 s34, s34, {32*1024}
    s_waitcnt lgkmcnt(0)
    s_barrier
    """)
    R0 = 12
    for w in range(4):
        a(f"ds_read_b32 v{R0+16*w+12}, v9 offset:{w*4*3328+3072}")
        a(f"ds_read_b32 v{R0+16*w+13}, v10 offset:{w*4*3328+2048+8}")
    for w in range(4):
        for ch in range(2):
            a(f"ds_read_b128 v[{R0+16*w+4*ch}:{R0+16*w+4*ch+3}], v8 offset:{w*4*3328+ch*1024}")
        a(f"ds_read_b64 v[{R0+16*w+8}:{R0+16*w+9}], v8 offset:{w*4*3328+2048}")
    a("s_waitcnt lgkmcnt(12)")
    a(f"v_max_f32 v8, v{R0+12}, v{R0+28}\nv_max3_f32 v8, v{R0+44}, v{R0+60}, v8")
    for w in range(4): a(f"v_sub_f32 v{R0+16*w+12}, v{R0+16*w+12}, v8")
    for w in range(4): a(f"v_exp_f32 v{R0+16*w+12}, v{R0+16*w+12}")
    a(f"v_mul_f32 v9, v{R0+13}, v{R0+12}")
    for w in range(1, 4): a(f"v_fma_f32 v9, v{R0+16*w+13}, v{R0+16*w+12}, v9")
    a("v_rcp_f32 v9, v9")
    for w in range(4): a(f"v_mul_f32 v{R0+16*w+12}, v{R0+16*w+12}, v9")
    a("s_waitcnt lgkmcnt(0)")
    for w in range(4):
        for k in range(10):
            if w == 0: a(f"v_mul_f32 v{R0+k}, v{R0+k}, v{R0+12}")
            else: a(f"v_fma_f32 v{R0+k}, v{R0+16*w+k}, v{R0+16*w+12}, v{R0+k}")
    for k in range(5): a(f"v_cvt_pk_bf16_f32 v{R0+16+k}, v{R0+2*k}, v{R0+2*k+1}")
    a(f"""
    buffer_store_dwordx4 v[{R0+16}:{R0+19}], v{V_L16}, s[{S_WS}:{S_WS+3}], s35 offen
    s_mov_b32 exec_hi, 0
    buffer_store_dword v{R0+20}, v{V_L16}, s[{S_WS}:{S_WS+3}], s34 offen
    """)
    stm.end(a, S_WS, S_WAVE, 1)
    a.label("L2_END")
    a("s_endpgm")
    n = a.fix(verbose=bool(os.environ.get("VERB")))
    return a, n
if __name__ == "__main__":
    a, n = gen(); print(n, len(a.ins))
```

```python
from asmlib import *
from layout import *
import stamp as stm
import os
L3V = os.environ.get('L3V', 'rbp')
LDS_L3 = 72 * 1024 + 6 * 4096
S_WS, S_OUT = 4, 8
S_WAVE = 20
def srd(a, d, src, nbytes):
    a(f"s_mov_b32 s{d}, s{src}\ns_mov_b32 s{d+1}, s{src+1}\ns_mov_b32 s{d+2}, {nbytes}\ns_mov_b32 s{d+3}, 0x00020000")
AF = 16
PF = 88
PR = PF + 16
ACC = PR + 8 * NSPLIT
BB = ACC + 32
NV3 = BB + 32
def gen():
    a = Asm()
    a("s_cmp_ge_u32 s2, 192\ns_cbranch_scc1 L3_END")
    stm.begin(a)
    a("s_load_dwordx2 s[48:49], s[0:1], 80")
    a("s_load_dwordx2 s[50:51], s[0:1], 64")
    a(f"""
    v_lshrrev_b32 v8, 6, v0
    v_and_b32 v0, 63, v0
    v_readfirstlane_b32 s{S_WAVE}, v8
    v_lshlrev_b32 v1, 4, v0
    s_and_b32 s21, s2, 7
    s_lshr_b32 s22, s2, 3             ; 0..23
    s_mul_i32 s23, s22, 43
    s_lshr_b32 s23, s23, 8            ; /6
    s_mul_i32 s24, s23, 6
    s_sub_u32 s24, s22, s24           ; nrange 0..5
    s_lshl_b32 s21, s21, 2
    s_add_u32 s21, s21, s23           ; Tpair 0..31
    s_cmp_ge_u32 s{S_WAVE}, 3
    s_cselect_b32 s25, 1, 0           ; kh
    s_mul_i32 s26, s25, 3
    s_sub_u32 s26, s{S_WAVE}, s26
    s_mul_i32 s27, s24, 3
    s_add_u32 s27, s27, s26           ; ntile 0..17
    s_lshl_b32 s28, s21, 1
    s_add_u32 s28, s28, s25           ; final T
    s_mul_i32 s29, s21, {72*1024}
    s_add_u32 s30, s{S_WAVE}, {'s24' if 'r' in L3V else '0'}
    s_cmp_ge_u32 s30, 6
    s_cselect_b32 s36, 6, 0
    s_sub_u32 s30, s30, s36
    s_mul_i32 s30, s30, {12*1024}
    s_add_u32 s29, s29, s30
    s_add_u32 s29, s29, {WS_O}
    s_mul_i32 s31, s27, 36
    s_mul_i32 s32, s25, 18
    s_add_u32 s31, s31, s32
    s_lshl_b32 s31, s31, 10
    s_add_u32 s31, s31, {WS_WO}
    s_mul_i32 s33, s28, 18
    s_add_u32 s33, s33, s27
    s_lshl_b32 s33, s33, 11
    s_add_u32 s33, s33, {WS_P}
    s_lshl_b32 s34, s28, 7
    s_add_u32 s34, s34, {WS_G}
    v_and_b32 v2, 31, v0
    v_lshlrev_b32 v3, 2, v2
    s_waitcnt lgkmcnt(0)
    """)
    srd(a, S_WS, 48, WS_SIZE)
    srd(a, S_OUT, 50, 2048 * 1152)
    for i in range(3):
        a(f"s_add_u32 m0, s30, {i*4096}")
        for j in range(4):
            a.vmem(f"buffer_load_dwordx4 v1, s[{S_WS}:{S_WS+3}], s29 offen offset:{j*1024} lds", "B")
        a("s_add_u32 s29, s29, 4096")
    if 'b' in L3V: a("s_barrier")
    for k in range(18):
        a.vmem(f"buffer_load_dwordx4 v[{AF+4*k}:{AF+4*k+3}], v1, s[{S_WS}:{S_WS+3}], s31 offen offset:{(k%4)*1024}", ("A", k))
        if k % 4 == 3: a("s_add_u32 s31, s31, 4096")
    pl = [lambda: a.vmem(f"buffer_load_dword v4, v3, s[{S_WS}:{S_WS+3}], s34 offen", "g")]
    for s in range(NSPLIT):
        for ch in range(2):
            def f(s=s, ch=ch):
                a.vmem(f"buffer_load_dwordx4 v[{PR+8*s+4*ch}:{PR+8*s+4*ch+3}], v1, s[{S_WS}:{S_WS+3}], s33 offen offset:{ch*1024}", ("P", s))
                if ch: a(f"s_add_u32 s33, s33, {64*18*2048}")
            pl.append(f)
    if 'p' not in L3V:
        while pl: pl.pop(0)()
    a(f"s_mul_i32 s35, s25, {18*1024}\nv_add_u32 v5, s35, v1")
    stm.stamp(a, 1)
    a.wait_vm("B")
    stm.stamp(a, 2)
    a("s_barrier")
    def brd(m):
        k, t = m // 2, m % 2
        b = BB + 4 * (m % 8)
        a.lds(f"ds_read_b128 v[{b}:{b+3}], v5 offset:{t*36*1024 + k*1024}", ("b", m % 8))
    for m in range(7): brd(m)
    while pl: pl.pop(0)()
    for m in range(36):
        k, t = m // 2, m % 2
        a.wait_lg(("b", m % 8))
        if t == 0: a.wait_vm(("A", k))
        b = BB + 4 * (m % 8); d = ACC + 16 * t
        c = "0" if k == 0 else f"v[{d}:{d+15}]"
        a(f"v_mfma_f32_32x32x16_bf16 v[{d}:{d+15}], v[{AF+4*k}:{AF+4*k+3}], v[{b}:{b+3}], {c}")
        if m + 7 < 36: brd(m + 7)
    stm.stamp(a, 3)
    for s in range(NSPLIT):
        a.wait_vm(("P", s))
        for k in range(8):
            r = PR + 8 * s + k
            if s == 0:
                a(f"v_lshlrev_b32 v{PF+2*k}, 16, v{r}\nv_and_b32 v{PF+2*k+1}, 0xffff0000, v{r}")
            else:
                a(f"v_lshlrev_b32 v8, 16, v{r}\nv_and_b32 v{r}, 0xffff0000, v{r}\nv_add_f32 v{PF+2*k}, v{PF+2*k}, v8\nv_add_f32 v{PF+2*k+1}, v{PF+2*k+1}, v{r}")
    stm.stamp(a, 4)
    a(f"""
    s_lshl_b32 s35, s{S_WAVE}, 12
    s_add_u32 s35, s35, {72*1024}
    v_add_u32 v6, s35, v1
    s_mov_b32 s37, {-3*4096 & 0xffffffff}
    s_cmp_eq_u32 s25, 0
    s_cselect_b32 s36, {3*4096}, s37
    v_add_u32 v7, s36, v6
    s_cbranch_scc1 L3_K0
    """)
    for ch in range(4): a(f"ds_write_b128 v6, v[{ACC+4*ch}:{ACC+4*ch+3}] offset:{ch*1024}")
    for r in range(16): a(f"v_mov_b32 v{ACC+r}, v{ACC+16+r}")
    a("s_branch L3_X")
    a.label("L3_K0")
    for ch in range(4): a(f"ds_write_b128 v6, v[{ACC+16+4*ch}:{ACC+16+4*ch+3}] offset:{ch*1024}")
    a.label("L3_X")
    a("s_waitcnt lgkmcnt(0)\ns_barrier")
    for ch in range(4): a(f"ds_read_b128 v[{BB+4*ch}:{BB+4*ch+3}], v7 offset:{ch*1024}")
    a("v_sub_f32 v8, 1.0, v4")
    for r in range(16): a(f"v_mul_f32 v{PF+r}, v{PF+r}, v8")
    a(f"""
    v_mul_u32_u24 v9, 1152, v2
    v_lshrrev_b32 v10, 5, v0
    v_lshl_add_u32 v9, v10, 4, v9
    s_mul_i32 s35, s28, {32*1152}
    s_lshl_b32 s36, s27, 6
    s_add_u32 s35, s35, s36
    s_waitcnt lgkmcnt(0)
    """)
    for r in range(16): a(f"v_add_f32 v{ACC+r}, v{ACC+r}, v{BB+r}")
    for r in range(16): a(f"v_fma_f32 v{ACC+r}, v{ACC+r}, v4, v{PF+r}")
    for k in range(8): a(f"v_cvt_pk_bf16_f32 v{AF+k}, v{ACC+2*k}, v{ACC+2*k+1}")
    for ap in range(2):
        a(f"v_permlane32_swap_b32 v{AF+4*ap}, v{AF+4*ap+2}")
        a(f"v_permlane32_swap_b32 v{AF+4*ap+1}, v{AF+4*ap+3}")
    for ap in range(2):
        a(f"buffer_store_dwordx4 v[{AF+4*ap}:{AF+4*ap+3}], v9, s[{S_OUT}:{S_OUT+3}], s35 offen offset:{ap*32}")
    stm.end(a, S_WS, S_WAVE, 2)
    a.label("L3_END")
    a("s_endpgm")
    n = a.fix()
    return a, n
```

```python
import sys, importlib
import os
import gen_l1, gen_l2, gen_l3, gen_l2f
from asmlib import *
HDR = open("gated_mix__softmax_full_mha__geglu_ffn__prompt.s.ref").read().split("; Override launch")[0]
def build(path):
    a1, _ = gen_l1.gen("l1_kernel")
    a2, _ = gen_l2.gen()
    a3, _ = gen_l3.gen()
    ks = [("l1_kernel", a1, 256, 512, gen_l1.LDS_L1, 256),
          ("l2_kernel", a2, gen_l2.NG + gen_l2.NA, 256, gen_l2.LDS_L2, 168),
          ("l3_kernel", a3, 192, 384, gen_l3.LDS_L3, gen_l3.NV3)]
    if os.environ.get("FUSED", "0") == "1":
        a2, _ = gen_l2f.gen()
        ks[1] = ("l2_kernel", a2, 256, 512, gen_l2f.LDS_L2, 256)
    only = os.environ.get("ONLY")
    if only: ks = [k for k in ks if k[0][1] in only]
    s = HDR
    for nm, a, g, b, lds, nv in ks:
        s += f"; @launch kernel={nm} grid=({g},1,1) block=({b},1,1) lds={lds}\n"
    s += '.amdgcn_target "amdgcn-amd-amdhsa--gfx950"\n.text\n'
    for nm, a, g, b, lds, nv in ks:
        s += f".globl {nm}\n.p2align 8\n.type {nm},@function\n{nm}:\n" + a.text()
    s += '.section .rodata,"a"\n.p2align 6\n'
    for nm, a, g, b, lds, nv in ks:
        s += kdesc(nm, nv)
    open(path, "w").write(s)
if __name__ == "__main__":
    import stamp
    if "stamp" in sys.argv: stamp.ON = True
    build(sys.argv[1] if len(sys.argv) > 1 else "full.s")
```

```python
from asmlib import *
from layout import *
import stamp as stm

VX = 112
ACC = [48, 80]
AR = 16; NB = 8; LA = 7
V_L16, V_DMA = 1, 2
V_XD = [3, 15]
V_RB = 4
V_C1 = 10
V_XR = 11
VT = [11, 12, 13, 14, 15, 3, 0]
LDS_L1 = 160 * 1024
SLOT_J = [0, 3, 6, 9, 12, 15]

S_X, S_W0, S_W1, S_WS = 4, 8, 12, 16
S_WAVE, S_MT, S_SL = 20, 21, 22
S_T = 23
S_M0B = 24
S_HOFF = 25
S_C2 = 26
S_CNT = 27
S_COL = 28
S_XB = 29
S_TMP = 30
S_WR = 36
S_XP = 88
S_SC, S_QB = 45, 46

def srd(a, d, src, nbytes):
    a(f"s_mov_b32 s{d}, s{src}\ns_mov_b32 s{d+1}, s{src+1}\ns_mov_b32 s{d+2}, {nbytes}\ns_mov_b32 s{d+3}, 0x00020000")

import os
STORE_FLAGS = os.environ.get("HFLAGS", " sc1")
QFLAGS = os.environ.get("QFLAGS", "")
XFREE = 4
import os
FINE = os.environ.get('FINE') == '1'
FSLOTS = [int(x) for x in os.environ.get('FSLOTS', '').split()]

MAXOUT = int(os.environ.get("MAXOUT", 12))
XLEAD = int(os.environ.get("XLEAD", 4))
PERSLOT = int(os.environ.get("PERSLOT", 2))
WLEAD = int(os.environ.get("WLEAD", 24))
PRE2 = int(os.environ.get("PRE2", 4))
OPENG = int(os.environ.get("OPENG", 3))
PRIO = int(os.environ.get("PRIO", 0))
ABL = os.environ.get("ABL", "")
XPRE = int(os.environ.get("XPRE", 1))
XADV = int(os.environ.get("XADV", 0))
PK = int(os.environ.get("PK", 0))
MERGE = os.environ.get("MERGE", "0 1 0 0 1 0 0 1 0 0 1 0 0")
class Prog:
    XJ = [12, 16]
    def __init__(self, a, phases, merge):
        self.a = a; self.ph = phases
        n = len(phases)
        units = []
        if merge:
            nx = [0, 0]
            for c in MERGE.split():
                units.append((int(c), nx[int(c)])); nx[int(c)] += 1
            assert nx[0] == 9
            units += [(1, p) for p in range(nx[1], 9)]
            self.g_end = 8 * len(MERGE.split())
            first = 2
        else:
            first = 0
        for p in range(first, n): units += [(p, q) for q in range(9)]
        self.units = units
        self.slots = [(p, 4 * q + k, t) for (p, q) in units for k in range(4) for t in range(2)]

    def emit(self, side, pre, exits, late, late2):
        a = self.a
        N = len(self.slots)
        U = self.units
        first_use = {u: 8 * i for i, u in enumerate(U)}
        xfirst = {}
        for i, (p, q) in enumerate(U): xfirst.setdefault(q, 8 * i)
        xuse = dict(xfirst)
        for q in range(9):
            xfirst[q] = 0.1 * (q > 0) if q < XPRE else max(1, xuse[max(0, q - XADV)])
        need = [(max(first_use[u] - WLEAD, 0.5 if first_use[u] else 0), 1, ("W", u)) for u in U] + [(xfirst[q], 2, ("X", q)) for q in range(9)]
        need.sort(key=lambda e: (e[0], e[1]))
        queue = []
        for e in need:
            if e[2][0] == "W": queue.append((e[2], 0))
            else: queue += [(e[2], q) for q in range(4)]
        free = list(range(12))
        busy = []
        jof = {}; issue_pos = {}
        xdone = set(); xread = set(); opened = set()
        cur = [0]
        prio = {}
        def can_issue():
            if not queue: return False
            (kind, v), q = queue[0]
            if kind == "W": return bool(free)
            return v < 2 or (v - 2) in xdone
        def issue():
            (kind, v), q = queue.pop(0)
            if kind == "W":
                j = free.pop(0); jof[v] = j; busy.append((v, j)); issue_pos[v] = cur[0]
                ph = self.ph[v[0]]
                a(f"s_add_u32 m0, s{S_M0B}, {j * 8192}")
                a(f"s_add_u32 s{S_TMP}, s{S_WR + v[1]}, {ph['col']}")
                if "d" in ABL and v[0] >= 2: a.vm.append(("W", v)); a.vm.remove(("W", v))
                else: a.vmem(f"buffer_load_dwordx4 v{V_DMA}, s[{ph['srd']}:{ph['srd']+3}], s{S_TMP} offen lds", ("W", v))
            else:
                a(f"s_add_u32 m0, s{S_M0B}, {(self.XJ[v % 2] + q) * 8192}")
                a(f"s_add_u32 s{S_TMP}, s{S_XP + v}, {q * 8 * 1152}")
                a.vmem(f"buffer_load_dwordx4 v{V_XD[q & 1]}, s[{S_X}:{S_X+3}], s{S_TMP} offen lds", ("X", v))
        def nout(): return sum(1 for t in a.vm if t != "st")
        def pump(k, lim=None):
            while k > 0 and can_issue() and nout() < (lim or MAXOUT):
                issue(); k -= 1
        def ensure(tok):
            while any(e[0] == tok for e in queue):
                assert can_issue(), ("not issuable", tok, queue[0])
                issue()
        def do_xread(q):
            ensure(("X", q))
            a.wait_vm(("X", q))
            for s in range(4):
                r = VX + 4 * (4 * q + s)
                a.lds(f"ds_read_b128 v[{r}:{r+3}], v{V_XR+s} offset:{(q % 2) * 32768}", ("XT", q))
            xread.add(q)
        def open_unit(u):
            ensure(("W", u))
            i = U.index(u)
            grp = [u]
            for v in U[i + 1:i + OPENG]:
                if v in issue_pos and (cur[0] - issue_pos[v] >= 24 or ("W", v) not in a.vm): grp.append(v)
                else: break
            a.wait_vm(("W", grp[-1]))
            if not ("b" in ABL and u[0] >= 2): a("s_barrier")
            opened.update(grp)
            if PRIO:
                n = 8 * len(grp)
                a("s_setprio 3")
                prio.clear()
                for lv in (1, 2, 3): prio[cur[0] + n * lv // 4] = 3 - lv
            for (v, j) in list(busy):
                if first_use[v] + 7 < cur[0]:
                    busy.remove((v, j)); free.append(j)
        def rd(m):
            p, k, t = self.slots[m]
            u = (p, k // 4)
            if u not in opened: open_unit(u)
            j = jof[u]
            va = V_RB + 2 * (j // 8) + t
            off = (j % 8) * 8192 + (k % 4) * 2048
            buf = AR + 4 * (m % NB)
            a.lds(f"ds_read_b64_tr_b16 v[{buf}:{buf+1}], v{va} offset:{off}", ("A", m % NB))
            if "l" not in ABL: a.lds(f"ds_read_b64_tr_b16 v[{buf+2}:{buf+3}], v{va} offset:{off+512}", ("A", m % NB))
        if FINE: stm.stamp(a, 2)
        pump(5)
        late()
        a("s_barrier")
        pump(PRE2 if XPRE == 1 else 4, 99)
        late2()
        if FINE: stm.stamp(a, 3)
        for q in range(XPRE):
            do_xread(q)
            if q + 1 < XPRE:
                a.wait_lg(("XT", q)); xdone.add(q)
                if q >= 7: free.extend(range(self.XJ[q % 2], self.XJ[q % 2] + 4))
                pump(4, 99)
        pump(4)
        if FINE: stm.stamp(a, 4)
        for m in range(LA): rd(m)
        stm.stamp(a, 5 if FINE else 1)
        for m in range(N):
            p, k, t = self.slots[m]
            for f in pre.get(m, []): f()
            a.wait_lg(("A", m % NB))
            if k // 4 not in xdone: a.wait_lg(("XT", k // 4))
            for q in xread:
                if q not in xdone and ("XT", q) not in a.lg:
                    xdone.add(q)
                    if q >= 7: free.extend(range(self.XJ[q % 2], self.XJ[q % 2] + 4))
            buf = AR + 4 * (m % NB)
            d = ACC[p % 2] + 16 * t
            A = f"v[{buf}:{buf+3}]"; B = f"v[{VX+4*k}:{VX+4*k+3}]"
            if not self.ph[p]["swapped"]: A, B = B, A
            c = "0" if k == 0 else f"v[{d}:{d+15}]"
            a(f"v_mfma_f32_32x32x16_bf16 v[{d}:{d+15}], {A}, {B}, {c}")
            cur[0] = m + 1
            if cur[0] in prio: a(f"s_setprio {prio[cur[0]]}")
            if m + LA < N: rd(m + LA)
            for q in range(9):
                if q not in xread and xfirst[q] - XLEAD <= m: do_xread(q)
            pump(PERSLOT)
            for f in side.get(m, []): f()
            if m in exits: exits[m]()
            if FINE:
                if m == 15: stm.stamp(a, 6)
                if m == 47: stm.stamp(a, 7)
            elif FSLOTS:
                if m + 1 in FSLOTS: stm.stamp(a, 2 + FSLOTS.index(m + 1))
            elif (m + 1) % 72 == 0 and (m + 1) // 72 <= 6: stm.stamp(a, 1 + (m + 1) // 72)

def spread(d, items, start, end):
    n = end - start
    for i, it in enumerate(items):
        d.setdefault(start + i * n // len(items), []).append(it)
    return d

def gelu_items(a, G, n=32):
    items = []
    if "g" in ABL: return [lambda: None]
    if PK:
        for g in range(n // 4):
            xs = [G + 4 * g, G + 4 * g + 2]; ts = [12, 14]
            P2 = lambda r: f"v[{r}:{r+1}]"
            seq = []
            seq += [f"v_pk_mul_f32 {P2(t)}, {P2(x)}, {P2(x)}" for x, t in zip(xs, ts)]
            seq += [f"v_pk_fma_f32 {P2(t)}, {P2(t)}, s[{S_C2}:{S_C2+1}], {P2(V_C1)} op_sel_hi:[1,0,0]" for x, t in zip(xs, ts)]
            seq += [f"v_pk_mul_f32 {P2(t)}, {P2(t)}, {P2(x)}" for x, t in zip(xs, ts)]
            seq += [f"v_exp_f32 v{t}, v{t}" for t in range(12, 16)]
            seq += [f"v_pk_add_f32 {P2(t)}, {P2(t)}, 1.0 op_sel_hi:[1,0]" for x, t in zip(xs, ts)]
            seq += [f"v_rcp_f32 v{t}, v{t}" for t in range(12, 16)]
            seq += [f"v_pk_mul_f32 {P2(x)}, {P2(t)}, {P2(x)}" for x, t in zip(xs, ts)]
            items += [(lambda s=s: a(s)) for s in seq]
        return items
    for g in range(n // 4):
        xs = [G + 4 * g + i for i in range(4)]
        ts = VT[:4]
        seq = []
        seq += [f"v_mul_f32 v{t}, v{x}, v{x}" for x, t in zip(xs, ts)]
        seq += [f"v_fma_f32 v{t}, v{t}, s{S_C2}, v{V_C1}" for x, t in zip(xs, ts)]
        seq += [f"v_mul_f32 v{t}, v{t}, v{x}" for x, t in zip(xs, ts)]
        seq += [f"v_exp_f32 v{t}, v{t}" for x, t in zip(xs, ts)]
        seq += [f"v_add_f32 v{t}, 1.0, v{t}" for x, t in zip(xs, ts)]
        seq += [f"v_rcp_f32 v{t}, v{t}" for x, t in zip(xs, ts)]
        seq += [f"v_mul_f32 v{x}, v{t}, v{x}" for x, t in zip(xs, ts)]
        items += [(lambda s=s: a(s)) for s in seq]
    return items
def fin_mul(a, t):
    G, U = ACC
    if PK: return [(lambda i=i: a(f"v_pk_mul_f32 v[{U+16*t+i}:{U+16*t+i+1}], v[{G+16*t+i}:{G+16*t+i+1}], v[{U+16*t+i}:{U+16*t+i+1}]")) for i in range(0, 16, 2)]
    return [(lambda i=i: a(f"v_mul_f32 v{U+16*t+i}, v{G+16*t+i}, v{U+16*t+i}")) for i in range(16)]
def fin_store(a):
    items = []
    for t in range(2):
        b = ACC[1] + 16 * t
        for j in range(2):
            for i in range(4):
                k = 4 * j + i
                items.append(lambda k=k, b=b: a(f"v_cvt_pk_bf16_f32 v{b+k}, v{b+2*k}, v{b+2*k+1}"))
            items.append(lambda j=j, b=b, t=t: a.vmem(f"buffer_store_dwordx4 v[{b+4*j}:{b+4*j+3}], v{V_L16}, s[{S_WS}:{S_WS+3}], s{S_HOFF} offen offset:{t*2048+j*1024}{STORE_FLAGS}", "st"))
    items.append(lambda: a(f"s_add_u32 s{S_HOFF}, s{S_HOFF}, 4096"))
    return items

def qk_epi(a, acc):
    L = []
    L.append(f"""s_cmp_ge_u32 s{S_COL}, 576
    s_cselect_b32 s{S_SC}, 1.0, {hex(f2u(QSCALE))}
    s_cselect_b32 s{S_QB}, {WS_K - WS_Q}, 0
    s_cselect_b32 s{S_TMP+1}, 576, 0
    s_sub_u32 s{S_TMP+1}, s{S_COL}, s{S_TMP+1}
    s_add_u32 s{S_QB}, s{S_QB}, s{S_HOFF}
    s_add_u32 s{S_COL}, s{S_COL}, 64""")
    for t in range(2):
        for aa in range(4):
            for bp in range(2):
                r = acc + 16 * t + 4 * aa + 2 * bp
                co = 32 * t + 8 * aa + 2 * bp
                L += [f"v_add3_u32 v11, v10, s{S_TMP+1}, {co}",
                      f"v_mul_u32_u24 v12, s{S_TMP+2}, v11",
                      f"v_lshrrev_b32 v12, 16, v12",
                      f"v_mul_u32_u24 v13, 18, v12",
                      f"v_sub_u32 v13, v11, v13",
                      f"v_mad_u32_u24 v14, v12, s{S_TMP+3}, v0",
                      f"v_and_b32 v12, 24, v13",
                      f"v_lshl_add_u32 v14, v12, 6, v14",
                      f"v_and_b32 v12, 7, v13",
                      f"v_lshl_add_u32 v14, v12, 1, v14",
                      f"v_mul_f32 v{r}, s{S_SC}, v{r}",
                      f"v_mul_f32 v{r+1}, s{S_SC}, v{r+1}",
                      f"v_cvt_pk_bf16_f32 v{r}, v{r}, v{r+1}",
                      ("vm", f"buffer_store_dword v{r}, v14, s[{S_WS}:{S_WS+3}], s{S_QB} offen{QFLAGS}")]
    return [(lambda s=s: a.vmem(s[1], "st") if isinstance(s, tuple) else a(s)) for s in L]
def v_epi(a, acc):
    L = [f"s_sub_u32 s{S_TMP+1}, s{S_COL}, 1152\ns_add_u32 s{S_COL}, s{S_COL}, 64"]
    for t in range(2):
        b = acc + 16 * t
        L += [f"v_add3_u32 v11, v10, s{S_TMP+1}, {32*t}",
              f"v_mul_u32_u24 v12, s{S_TMP+2}, v11",
              f"v_lshrrev_b32 v12, 16, v12",
              f"v_mul_u32_u24 v13, 18, v12",
              f"v_sub_u32 v13, v11, v13",
              f"v_mad_u32_u24 v14, v12, s{S_TMP+3}, v0",
              f"v_lshl_add_u32 v14, v13, 4, v14"]
        L += [f"v_cvt_pk_bf16_f32 v{b+k}, v{b+2*k}, v{b+2*k+1}" for k in range(8)]
        L += [("vm", f"buffer_store_dwordx4 v[{b}:{b+3}], v14, s[{S_WS}:{S_WS+3}], s{S_HOFF} offen{QFLAGS}"),
              ("vm", f"buffer_store_dwordx4 v[{b+4}:{b+7}], v14, s[{S_WS}:{S_WS+3}], s{S_HOFF} offen offset:640{QFLAGS}")]
    return [(lambda s=s: a.vmem(s[1], "st") if isinstance(s, tuple) else a(s)) for s in L]

XPOS_MERGE = {0: 0, 1: 2, 2: 12, 3: 24, 4: 36, 5: 46, 6: 56, 7: 66, 8: 76}
XPOS_PLAIN = {0: 0, 1: 1, 2: 8, 3: 16, 4: 24, 5: 32, 6: 40, 7: 48, 8: 56}

def rows_first(a, stride, scol):
    a(f"s_mul_i32 s47, s{S_WAVE}, {8*stride}\ns_add_u32 s47, s47, s{scol}")
    a(f"s_mul_i32 s{S_WR}, s34, {64*stride}\ns_add_u32 s{S_WR}, s{S_WR}, s47")
def late_setup(a, stride):
    a(f"s_add_u32 s33, s47, {9*64*stride}\ns_add_u32 s35, s{S_XB}, {9*128}")
    for p in range(1, 9):
        a(f"s_add_u32 s{S_WR+p}, s{S_WR+p-1}, {64*stride}\ns_cmp_eq_u32 s{S_WR+p}, s33\ns_cselect_b32 s{S_WR+p}, s47, s{S_WR+p}")
        a(f"s_add_u32 s{S_XP+p}, s{S_XP+p-1}, 128\ns_cmp_eq_u32 s{S_XP+p}, s35\ns_cselect_b32 s{S_XP+p}, s{S_XB}, s{S_XP+p}")
def late_valu(a):
    a(f"""
    v_lshlrev_b32 v{V_L16}, 4, v0
    v_and_b32 v21, 15, v0
    v_lshrrev_b32 v22, 2, v21       ; r
    v_and_b32 v21, 3, v21           ; c
    v_lshrrev_b32 v23, 5, v0        ; hf
    v_lshl_add_u32 v24, v23, 3, v22 ; 8hf + r
    v_lshlrev_b32 v24, 7, v24
    v_lshl_add_u32 v24, v21, 3, v24
    v_and_b32 v21, 16, v0
    v_lshl_add_u32 v24, v21, 1, v24
    v_and_b32 v22, 2, v22
    v_lshl_add_u32 v{V_RB}, v22, 5, v24
    v_xor_b32 v{V_RB+1}, 64, v{V_RB}
    v_add_u32 v{V_RB+2}, 0x10000, v{V_RB}
    v_add_u32 v{V_RB+3}, 0x10000, v{V_RB+1}
    v_add_u32 v{V_RB+4}, 0x20000, v{V_RB}
    v_add_u32 v{V_RB+5}, 0x20000, v{V_RB+1}
    v_and_b32 v21, 31, v0
    v_lshrrev_b32 v22, 1, v21
    v_and_b32 v22, 7, v22
    v_xor_b32 v22, v22, v23
    v_lshlrev_b32 v22, 4, v22
    v_and_b32 v24, 7, v21
    v_lshl_add_u32 v22, v24, 7, v22
    v_lshrrev_b32 v24, 3, v21
    v_lshl_add_u32 v22, v24, 13, v22
    s_add_u32 s33, s{S_M0B}, 0x18000
    v_add_u32 v{V_XR}, s33, v22
    v_xor_b32 v{V_XR+1}, 32, v{V_XR}
    v_xor_b32 v{V_XR+2}, 64, v{V_XR}
    v_xor_b32 v{V_XR+3}, 96, v{V_XR}
    """)

def gen(name):
    a = Asm()
    a("s_load_dwordx4 s[48:51], s[0:1], 0")
    a("s_load_dwordx4 s[52:55], s[0:1], 32")
    a("s_load_dwordx2 s[56:57], s[0:1], 80")
    a("s_load_dwordx2 s[58:59], s[0:1], 56")
    a(f"s_cmp_ge_u32 s2, 256\ns_cbranch_scc1 L1_END")
    stm.begin(a)
    a(f"""
    v_lshrrev_b32 v16, 6, v0
    v_and_b32 v0, 63, v0
    v_readfirstlane_b32 s{S_WAVE}, v16
    s_and_b32 s30, s2, 7            ; xcd
    s_lshr_b32 s31, s2, 3           ; j
    s_and_b32 s32, s30, 1
    s_lshl_b32 s32, s32, 2
    s_and_b32 s33, s31, 3           ; m local
    s_add_u32 s{S_MT}, s32, s33     ; mtile
    s_lshr_b32 s35, s30, 1          ; xn
    s_lshr_b32 s{S_SL}, s31, 2      ; s (0..7)
    s_lshl_b32 s34, s33, 1
    s_add_u32 s34, s34, s{S_SL}
    s_cmp_ge_u32 s34, 9
    s_cselect_b32 s33, 9, 0
    s_sub_u32 s34, s34, s33         ; rotation r
    v_lshrrev_b32 v17, 3, v0
    v_and_b32 v18, 7, v0            ; position
    v_lshrrev_b32 v19, 4, v0
    v_xor_b32 v19, v19, v18
    v_lshlrev_b32 v19, 4, v19
    v_mul_u32_u24 v20, 1152, v17
    v_add_u32 v{V_XD[0]}, v20, v19
    v_xor_b32 v19, 64, v19
    v_add_u32 v{V_XD[1]}, v20, v19
    v_lshlrev_b32 v20, 1, v17
    v_and_b32 v20, 4, v20
    v_xor_b32 v20, v20, v18
    v_lshlrev_b32 v20, 4, v20       ; seg*16
    s_lshl_b32 s{S_M0B}, s{S_WAVE}, 10
    s_lshl_b32 s{S_T}, s{S_MT}, 3
    s_add_u32 s{S_T}, s{S_T}, s{S_WAVE}
    s_mul_i32 s{S_XB}, s{S_T}, {32*1152}
    s_lshl_b32 s{S_XP}, s34, 7
    s_add_u32 s{S_XP}, s{S_XP}, s{S_XB}
    s_mov_b32 s{S_X+2}, {2048*1152}
    s_mov_b32 s{S_X+3}, 0x00020000
    s_mov_b32 s{S_W0+3}, 0x00020000
    """)
    a(f"s_cmp_ge_u32 s{S_SL}, 6\ns_cbranch_scc1 L1_QKV")

    ST = 9216
    a(f"""
    v_mul_u32_u24 v{V_DMA}, {ST}, v17
    v_add_u32 v{V_DMA}, v{V_DMA}, v20
    s_mul_i32 s35, s35, 6
    s_add_u32 s46, s35, s{S_SL}
    s_mul_i32 s35, s46, 384
    s_mov_b32 s{S_W0+2}, {576*ST}
    """)
    rows_first(a, ST, 35)
    if FINE: stm.stamp(a, 1)
    a("s_waitcnt lgkmcnt(0)")
    a(f"s_mov_b32 s{S_X}, s48\ns_mov_b32 s{S_X+1}, s49\ns_mov_b32 s{S_W0}, s52\ns_mov_b32 s{S_W0+1}, s53")
    def late_ffn():
        srd(a, S_W1, 54, 576 * ST)
        late_setup(a, ST)
    def late2_ffn():
        srd(a, S_WS, 56, WS_SIZE)
        late_valu(a)
        a(f"""
        v_mov_b32 v{V_C1}, {hex(f2u(GC1))}
        s_mov_b32 s{S_C2}, {hex(f2u(GC2))}
        s_mul_i32 s{S_HOFF}, s{S_T}, {288*1024}
        s_mul_i32 s33, s46, {12*1024}
        s_add_u32 s{S_HOFF}, s{S_HOFF}, s33
        """)
    ph = []
    for i in range(3):
        ph.append(dict(srd=S_W0, col=128 * i, swapped=True))
        ph.append(dict(srd=S_W1, col=128 * i, swapped=True))
    P = Prog(a, ph, True)
    side = {}; pre = {}
    spread(side, gelu_items(a, ACC[0]), P.g_end + 3, 143)
    for i in (1, 2):
        b = 144 * i
        pre[b] = fin_mul(a, 0); pre[b + 1] = fin_mul(a, 1)
        spread(side, fin_store(a), b + 3, b + 40)
        spread(side, gelu_items(a, ACC[0]), b + 72 + 3, b + 142)
    P.emit(side, pre, {}, late_ffn, late2_ffn)
    for f in fin_mul(a, 0) + fin_mul(a, 1) + fin_store(a): f()
    stm.end(a, S_WS, S_WAVE, 0)
    a("s_endpgm")

    a.label("L1_QKV")
    ST = 3456
    a(f"""
    v_mul_u32_u24 v{V_DMA}, {ST}, v17
    v_add_u32 v{V_DMA}, v{V_DMA}, v20
    s_lshl_b32 s35, s35, 1
    s_add_u32 s35, s35, s{S_SL}
    s_sub_u32 s{S_SL}, s35, 6
    s_lshl_b32 s32, s{S_SL}, 2
    s_mul_i32 s33, s{S_SL}, 3
    s_add_u32 s33, s33, 3
    s_cmp_le_u32 s{S_SL}, 3
    s_cselect_b32 s32, s32, s33         ; start phase
    s_lshl_b32 s{S_COL}, s32, 6
    s_lshl_b32 s35, s32, 7
    """)
    a(f"s_mov_b32 s{S_W0+2}, {576*ST}")
    rows_first(a, ST, 35)
    a("s_waitcnt lgkmcnt(0)")
    a(f"s_mov_b32 s{S_X}, s48\ns_mov_b32 s{S_X+1}, s49\ns_mov_b32 s{S_W0}, s50\ns_mov_b32 s{S_W0+1}, s51")
    late_q = lambda: late_setup(a, 3456)
    a(f"s_cmp_ge_u32 s{S_SL}, 5\ns_cbranch_scc1 L1_V")
    def late2_qk():
        srd(a, S_WS, 56, WS_SIZE)
        late_valu(a)
        a(f"""
        s_movk_i32 s{S_TMP+2}, 3641
        s_mov_b32 s{S_TMP+3}, {QK_HS}
        s_mul_i32 s{S_HOFF}, s{S_T}, 1536
        s_add_u32 s{S_HOFF}, s{S_HOFF}, {WS_Q}
        v_lshlrev_b32 v10, 2, v23
        v_lshlrev_b32 v0, 4, v21
        """)
    a.vm = []; a.lg = []
    P = Prog(a, [dict(srd=S_W0, col=128 * i, swapped=True) for i in range(4)], False)
    side = {}
    for i in range(1, 4): spread(side, qk_epi(a, ACC[(i - 1) % 2]), 72 * i + 3, 72 * i + 70)
    def exit3():
        a(f"s_cmp_ge_u32 s{S_SL}, 3\ns_cbranch_scc1 L1_QK3")
    P.emit(side, {}, {215: exit3}, late_q, late2_qk)
    for f in qk_epi(a, ACC[1]): f()
    stm.end(a, S_WS, S_WAVE, 0)
    a("s_endpgm")
    a.label("L1_QK3")
    for f in qk_epi(a, ACC[0]): f()
    stm.end(a, S_WS, S_WAVE, 0)
    a("s_endpgm")
    a.label("L1_V")
    def late2_v():
        srd(a, S_WS, 56, WS_SIZE)
        late_valu(a)
        a(f"""
        s_movk_i32 s{S_TMP+2}, 3641
        s_mov_b32 s{S_TMP+3}, {64*1280}
        s_mul_i32 s{S_HOFF}, s{S_T}, 1280
        s_add_u32 s{S_HOFF}, s{S_HOFF}, {WS_V}
        v_mov_b32 v10, v21
        v_mul_u32_u24 v0, 320, v23
        """)
    a.vm = []; a.lg = []
    P = Prog(a, [dict(srd=S_W0, col=128 * i, swapped=False) for i in range(3)], False)
    side = {}
    for i in range(1, 3): spread(side, v_epi(a, ACC[(i - 1) % 2]), 72 * i + 3, 72 * i + 40)
    P.emit(side, {}, {}, late_q, late2_v)
    for f in v_epi(a, ACC[0]): f()
    a(f"s_cmp_lg_u32 s{S_SL}, 7\ns_cbranch_scc1 L1_END")
    srd(a, S_W1, 58, 1152)
    a(f"v_lshrrev_b32 v11, 9, v{V_L16}\nv_lshlrev_b32 v11, 4, v11")
    a.vm = []
    GB = [16 + 4 * i for i in range(8)] + [96 + 4 * i for i in range(4)]
    D = ACC[1]
    for rnd in range(3):
        for i in range(12):
            ks = rnd * 12 + i
            if i % 4 == 0: a(f"s_sub_u32 s{S_TMP}, s{S_XP + ks // 4}, s{S_XB}")
            a.vmem(f"buffer_load_dwordx4 v[{GB[i]}:{GB[i]+3}], v11, s[{S_W1}:{S_W1+3}], s{S_TMP} offen offset:{(ks%4)*32}", i)
        for i in range(12):
            ks = rnd * 12 + i
            a.wait_vm(i)
            c = "0" if ks == 0 else f"v[{D}:{D+15}]"
            a(f"v_mfma_f32_32x32x16_bf16 v[{D}:{D+15}], v[{GB[i]}:{GB[i]+3}], v[{VX+4*ks}:{VX+4*ks+3}], {c}")
    a(f"""
    v_mul_f32 v12, {hex(f2u(-math.log2(math.e)))}, v{D}
    v_exp_f32 v12, v12
    v_add_f32 v12, 1.0, v12
    v_rcp_f32 v12, v12
    v_lshlrev_b32 v13, 2, v10
    s_lshl_b32 s30, s{S_T}, 7
    s_add_u32 s30, s30, {WS_G}
    buffer_store_dword v12, v13, s[{S_WS}:{S_WS+3}], s30 offen
    """)
    a.label("L1_END")
    a("s_endpgm")
    n = a.fix()
    return a, n
if __name__ == "__main__":
    a, n = gen("l1_kernel"); print(n, len(a.ins))
    m = 0
    for x in a.ins:
        if x.kind == "mfma": m += 1
        if m > 160: break
        if x.kind == "vmem" or x.op in ("s_barrier",) or "vmcnt" in x.text or x.op == "ds_read_b128": print(m, x.text)
```

```python
from asmlib import *
from layout import *
import stamp as stm

VX = 112
ACC = [48, 80]
import os
STASH = int(os.environ.get('STASH', 0))
LEAD = int(os.environ.get('LEAD', 0))
CPF = int(os.environ.get('CPF', 1))
LPRIO = int(os.environ.get('LPRIO', 1))
AR = 16; NB = 7 if STASH else 8; LA = NB - 1
V_U = 44
V_L16, V_DMA = 1, 2
V_XD = [3, 15]
V_RB = 4
V_C1 = 10
V_XR = 11
VT = [11, 12, 13, 14, 15, 3, 0]
LDS_L1 = 160 * 1024
SLOT_J = [0, 3, 6, 9, 12, 15]

S_X, S_W0, S_W1, S_WS = 4, 8, 12, 16
S_WAVE, S_MT, S_SL = 20, 21, 22
S_T = 23
S_M0B = 24
S_HOFF = 25
S_C2 = 26
S_CNT = 27
S_COL = 28
S_XB = 29
S_TMP = 30
S_WR = 36
S_XP = 88
S_SC, S_QB = 45, 46

def srd(a, d, src, nbytes):
    a(f"s_mov_b32 s{d}, s{src}\ns_mov_b32 s{d+1}, s{src+1}\ns_mov_b32 s{d+2}, {nbytes}\ns_mov_b32 s{d+3}, 0x00020000")

import os
STORE_FLAGS = os.environ.get("HFLAGS", " sc1")
QFLAGS = os.environ.get("QFLAGS", "")
XFREE = 4
import os
FINE = os.environ.get('FINE') == '1'
FSLOTS = [int(x) for x in os.environ.get('FSLOTS', '').split()]

MAXOUT = int(os.environ.get("MAXOUT", 12))
XLEAD = int(os.environ.get("XLEAD", 4))
PERSLOT = int(os.environ.get("PERSLOT", 2))
WLEAD = int(os.environ.get("WLEAD", 24))
PRE2 = int(os.environ.get("PRE2", 4))
OPENG = int(os.environ.get("OPENG", 3))
PRIO = int(os.environ.get("PRIO", 0))
ABL = os.environ.get("ABL", "")
XPRE = int(os.environ.get("XPRE", 1))
XADV = int(os.environ.get("XADV", 0))
PK = int(os.environ.get("PK", 0))
MERGE = os.environ.get("MERGE", "0 1 0 0 1 0 0 1 0 0 1 0 0")
class Prog:
    XJ = [12, 16]
    def __init__(self, a, phases, merge):
        self.a = a; self.ph = phases
        n = len(phases)
        units = []
        if merge:
            nx = [0, 0]
            for c in (("0 1 " * 9) if STASH else MERGE).split():
                units.append((int(c), nx[int(c)])); nx[int(c)] += 1
            assert nx[0] == 9
            units += [(1, p) for p in range(nx[1], 9)]
            self.g_end = 8 * len(MERGE.split())
            self.xrel = 144 + 72 if STASH else 0
            first = 2
        else:
            first = 0; self.xrel = 0
        for p in range(first, n): units += [(p, q) for q in range(9)]
        self.units = units
        self.slots = [(p, 4 * q + k, t) for (p, q) in units for k in range(4) for t in range(2)]

    def emit(self, side, pre, exits, late, late2, role=None, plan=None, stride=0):
        a = self.a
        N = len(self.slots)
        U = self.units
        first_use = {u: 8 * i for i, u in enumerate(U)}
        xfirst = {}
        for i, (p, q) in enumerate(U): xfirst.setdefault(q, 8 * i)
        xuse = dict(xfirst)
        for q in range(9):
            xfirst[q] = 0.1 * (q > 0) if q < XPRE else max(1, xuse[max(0, q - XADV)])
        need = [(max(first_use[u] - WLEAD, 0.5 if first_use[u] else 0), 1, ("W", u)) for u in U] + [(xfirst[q], 2, ("X", q)) for q in range(9)]
        need.sort(key=lambda e: (e[0], e[1]))
        queue = []
        for e in need:
            if e[2][0] == "W":
                if role != "F": queue.append((e[2], 0))
            else: queue += [(e[2], q) for q in range(4)]
        free = list(range(12))
        busy = []
        jof = {}; issue_pos = {}
        xdone = set(); xread = set(); opened = set()
        cur = [0]
        prio = {}
        def can_issue():
            if not queue: return False
            (kind, v), q = queue[0]
            if kind == "W": return bool(free)
            return v < 2 or (v - 2) in xdone
        def issue():
            (kind, v), q = queue.pop(0)
            if kind == "W":
                j = free.pop(0); jof[v] = j; busy.append((v, j)); issue_pos[v] = cur[0]
                ph = self.ph[v[0]]
                a(f"s_add_u32 m0, s{S_M0B}, {j * 8192}")
                a(f"s_add_u32 s{S_TMP}, s{S_WR + v[1]}, {ph['col']}")
                if "d" in ABL and v[0] >= 2: a.vm.append(("W", v)); a.vm.remove(("W", v))
                else: a.vmem(f"buffer_load_dwordx4 v{V_DMA}, s[{ph['srd']}:{ph['srd']+3}], s{S_TMP} offen lds", ("W", v))
                if role == "L":
                    a(f"s_add_u32 m0, m0, 4096\ns_add_u32 s{S_TMP}, s{S_TMP}, {32*stride}")
                    a.vmem(f"buffer_load_dwordx4 v{V_DMA}, s[{ph['srd']}:{ph['srd']+3}], s{S_TMP} offen lds", ("W", v))
                    plan["j"][v] = j
            else:
                a(f"s_add_u32 m0, s{S_M0B}, {(self.XJ[v % 2] + q) * 8192}")
                a(f"s_add_u32 s{S_TMP}, s{S_XP + v}, {q * 8 * 1152}")
                a.vmem(f"buffer_load_dwordx4 v{V_XD[q & 1]}, s[{S_X}:{S_X+3}], s{S_TMP} offen lds", ("X", v))
        def nout(): return sum((0.5 if role == "L" and t[0] == "W" else 1) for t in a.vm if t != "st")
        xrelease = []
        def pump(k, lim=None):
            while k > 0 and can_issue() and nout() < (lim or MAXOUT):
                issue(); k -= 1
        def ensure(tok):
            while any(e[0] == tok for e in queue):
                assert can_issue(), ("not issuable", tok, queue[0])
                issue()
        def do_xread(q):
            ensure(("X", q))
            a.wait_vm(("X", q))
            for s in range(4):
                r = VX + 4 * (4 * q + s)
                a.lds(f"ds_read_b128 v[{r}:{r+3}], v{V_XR+s} offset:{(q % 2) * 32768}", ("XT", q))
            xread.add(q)
        def open_unit(u):
            if role == "F":
                grp = plan["grp"][u]
                for v in grp: jof[v] = plan["j"][v]
            else:
                ensure(("W", u))
                i = U.index(u)
                grp = [u]
                for v in U[i + 1:i + OPENG]:
                    if v in issue_pos and (cur[0] - issue_pos[v] >= 24 or ("W", v) not in a.vm): grp.append(v)
                    else: break
                a.wait_vm(("W", grp[-1]))
                if role == "L": plan["grp"][u] = grp
            if not ("b" in ABL and u[0] >= 2): a("s_barrier")
            opened.update(grp)
            if PRIO:
                n = 8 * len(grp)
                a("s_setprio 3")
                prio.clear()
                for lv in (1, 2, 3): prio[cur[0] + n * lv // 4] = 3 - lv
            for (v, j) in list(busy):
                if first_use[v] + 7 < cur[0]:
                    busy.remove((v, j)); free.append(j)
            free.extend(xrelease); xrelease.clear()
        def rd(m):
            p, k, t = self.slots[m]
            u = (p, k // 4)
            if u not in opened: open_unit(u)
            j = jof[u]
            va = V_RB + 2 * (j // 8) + t
            off = (j % 8) * 8192 + (k % 4) * 2048
            buf = AR + 4 * (m % NB)
            a.lds(f"ds_read_b64_tr_b16 v[{buf}:{buf+1}], v{va} offset:{off}", ("A", m % NB))
            if "l" not in ABL: a.lds(f"ds_read_b64_tr_b16 v[{buf+2}:{buf+3}], v{va} offset:{off+512}", ("A", m % NB))
        if FINE: stm.stamp(a, 2)
        pump(4 if role == 'F' else 5)
        late()
        a("s_barrier")
        if role != 'F': pump(PRE2 if XPRE == 1 else 4, 99)
        late2()
        if FINE: stm.stamp(a, 3)
        for q in range(XPRE):
            do_xread(q)
            if q + 1 < XPRE:
                a.wait_lg(("XT", q)); xdone.add(q)
                if q >= 7: free.extend(range(self.XJ[q % 2], self.XJ[q % 2] + 4))
                pump(4, 99)
        pump(4)
        if FINE: stm.stamp(a, 4)
        for m in range(LA): rd(m)
        stm.stamp(a, 5 if FINE else 1)
        for m in range(N):
            p, k, t = self.slots[m]
            for f in pre.get(m, []): f()
            a.wait_lg(("A", m % NB))
            if k // 4 not in xdone: a.wait_lg(("XT", k // 4))
            for q in xread:
                if q not in xdone and ("XT", q) not in a.lg:
                    xdone.add(q)
                    if q >= 7 and not self.xrel: (xrelease if role else free).extend(range(self.XJ[q % 2], self.XJ[q % 2] + 4))
            if self.xrel and m == self.xrel: free.extend(range(12, 20))
            buf = AR + 4 * (m % NB)
            d = ACC[self.ph[p].get('acc', p % 2)] + 16 * t
            A = f"v[{buf}:{buf+3}]"; B = f"v[{VX+4*k}:{VX+4*k+3}]"
            if not self.ph[p]["swapped"]: A, B = B, A
            c = "0" if k == 0 else f"v[{d}:{d+15}]"
            a(f"v_mfma_f32_32x32x16_bf16 v[{d}:{d+15}], {A}, {B}, {c}")
            cur[0] = m + 1
            if cur[0] in prio: a(f"s_setprio {prio[cur[0]]}")
            if m + LA < N: rd(m + LA)
            for q in range(9):
                if q not in xread and xfirst[q] - XLEAD <= m: do_xread(q)
            pump(PERSLOT)
            for f in side.get(m, []): f()
            if m in exits: exits[m]()
            if FINE:
                if m == 15: stm.stamp(a, 6)
                if m == 47: stm.stamp(a, 7)
            elif FSLOTS:
                if m + 1 in FSLOTS: stm.stamp(a, 2 + FSLOTS.index(m + 1))
            elif (m + 1) % 72 == 0 and (m + 1) // 72 <= 6: stm.stamp(a, 1 + (m + 1) // 72)

def spread(d, items, start, end):
    n = end - start
    for i, it in enumerate(items):
        d.setdefault(start + i * n // len(items), []).append(it)
    return d

def gelu_items(a, G, n=32):
    items = []
    if "g" in ABL: return [lambda: None]
    if PK:
        for g in range(n // 4):
            xs = [G + 4 * g, G + 4 * g + 2]; ts = [12, 14]
            P2 = lambda r: f"v[{r}:{r+1}]"
            seq = []
            seq += [f"v_pk_mul_f32 {P2(t)}, {P2(x)}, {P2(x)}" for x, t in zip(xs, ts)]
            seq += [f"v_pk_fma_f32 {P2(t)}, {P2(t)}, s[{S_C2}:{S_C2+1}], {P2(V_C1)} op_sel_hi:[1,0,0]" for x, t in zip(xs, ts)]
            seq += [f"v_pk_mul_f32 {P2(t)}, {P2(t)}, {P2(x)}" for x, t in zip(xs, ts)]
            seq += [f"v_exp_f32 v{t}, v{t}" for t in range(12, 16)]
            seq += [f"v_pk_add_f32 {P2(t)}, {P2(t)}, 1.0 op_sel_hi:[1,0]" for x, t in zip(xs, ts)]
            seq += [f"v_rcp_f32 v{t}, v{t}" for t in range(12, 16)]
            seq += [f"v_pk_mul_f32 {P2(x)}, {P2(t)}, {P2(x)}" for x, t in zip(xs, ts)]
            items += [(lambda s=s: a(s)) for s in seq]
        return items
    for g in range(n // 4):
        xs = [G + 4 * g + i for i in range(4)]
        ts = VT[:4]
        seq = []
        seq += [f"v_mul_f32 v{t}, v{x}, v{x}" for x, t in zip(xs, ts)]
        seq += [f"v_fma_f32 v{t}, v{t}, s{S_C2}, v{V_C1}" for x, t in zip(xs, ts)]
        seq += [f"v_mul_f32 v{t}, v{t}, v{x}" for x, t in zip(xs, ts)]
        seq += [f"v_exp_f32 v{t}, v{t}" for x, t in zip(xs, ts)]
        seq += [f"v_add_f32 v{t}, 1.0, v{t}" for x, t in zip(xs, ts)]
        seq += [f"v_rcp_f32 v{t}, v{t}" for x, t in zip(xs, ts)]
        seq += [f"v_mul_f32 v{x}, v{t}, v{x}" for x, t in zip(xs, ts)]
        items += [(lambda s=s: a(s)) for s in seq]
    return items
def fin_mul(a, t, G=ACC[0], U=ACC[1]):
    if PK: return [(lambda i=i: a(f"v_pk_mul_f32 v[{U+16*t+i}:{U+16*t+i+1}], v[{G+16*t+i}:{G+16*t+i+1}], v[{U+16*t+i}:{U+16*t+i+1}]")) for i in range(0, 16, 2)]
    return [(lambda i=i: a(f"v_mul_f32 v{U+16*t+i}, v{G+16*t+i}, v{U+16*t+i}")) for i in range(16)]
def fin_store(a, U=ACC[1]):
    items = []
    for t in range(2):
        b = U + 16 * t
        for j in range(2):
            for i in range(4):
                k = 4 * j + i
                items.append(lambda k=k, b=b: a(f"v_cvt_pk_bf16_f32 v{b+k}, v{b+2*k}, v{b+2*k+1}"))
            items.append(lambda j=j, b=b, t=t: a.vmem(f"buffer_store_dwordx4 v[{b+4*j}:{b+4*j+3}], v{V_L16}, s[{S_WS}:{S_WS+3}], s{S_HOFF} offen offset:{t*2048+j*1024}{STORE_FLAGS}", "st"))
    items.append(lambda: a(f"s_add_u32 s{S_HOFF}, s{S_HOFF}, 4096"))
    return items

def qk_epi(a, acc):
    L = []
    L.append(f"""s_cmp_ge_u32 s{S_COL}, 576
    s_cselect_b32 s{S_SC}, 1.0, {hex(f2u(QSCALE))}
    s_cselect_b32 s{S_QB}, {WS_K - WS_Q}, 0
    s_cselect_b32 s{S_TMP+1}, 576, 0
    s_sub_u32 s{S_TMP+1}, s{S_COL}, s{S_TMP+1}
    s_add_u32 s{S_QB}, s{S_QB}, s{S_HOFF}
    s_add_u32 s{S_COL}, s{S_COL}, 64""")
    for t in range(2):
        for aa in range(4):
            for bp in range(2):
                r = acc + 16 * t + 4 * aa + 2 * bp
                co = 32 * t + 8 * aa + 2 * bp
                L += [f"v_add3_u32 v11, v10, s{S_TMP+1}, {co}",
                      f"v_mul_u32_u24 v12, s{S_TMP+2}, v11",
                      f"v_lshrrev_b32 v12, 16, v12",
                      f"v_mul_u32_u24 v13, 18, v12",
                      f"v_sub_u32 v13, v11, v13",
                      f"v_mad_u32_u24 v14, v12, s{S_TMP+3}, v0",
                      f"v_and_b32 v12, 24, v13",
                      f"v_lshl_add_u32 v14, v12, 6, v14",
                      f"v_and_b32 v12, 7, v13",
                      f"v_lshl_add_u32 v14, v12, 1, v14",
                      f"v_mul_f32 v{r}, s{S_SC}, v{r}",
                      f"v_mul_f32 v{r+1}, s{S_SC}, v{r+1}",
                      f"v_cvt_pk_bf16_f32 v{r}, v{r}, v{r+1}",
                      ("vm", f"buffer_store_dword v{r}, v14, s[{S_WS}:{S_WS+3}], s{S_QB} offen{QFLAGS}")]
    return [(lambda s=s: a.vmem(s[1], "st") if isinstance(s, tuple) else a(s)) for s in L]
def v_epi(a, acc):
    L = [f"s_sub_u32 s{S_TMP+1}, s{S_COL}, 1152\ns_add_u32 s{S_COL}, s{S_COL}, 64"]
    for t in range(2):
        b = acc + 16 * t
        L += [f"v_add3_u32 v11, v10, s{S_TMP+1}, {32*t}",
              f"v_mul_u32_u24 v12, s{S_TMP+2}, v11",
              f"v_lshrrev_b32 v12, 16, v12",
              f"v_mul_u32_u24 v13, 18, v12",
              f"v_sub_u32 v13, v11, v13",
              f"v_mad_u32_u24 v14, v12, s{S_TMP+3}, v0",
              f"v_lshl_add_u32 v14, v13, 4, v14"]
        L += [f"v_cvt_pk_bf16_f32 v{b+k}, v{b+2*k}, v{b+2*k+1}" for k in range(8)]
        L += [("vm", f"buffer_store_dwordx4 v[{b}:{b+3}], v14, s[{S_WS}:{S_WS+3}], s{S_HOFF} offen{QFLAGS}"),
              ("vm", f"buffer_store_dwordx4 v[{b+4}:{b+7}], v14, s[{S_WS}:{S_WS+3}], s{S_HOFF} offen offset:640{QFLAGS}")]
    return [(lambda s=s: a.vmem(s[1], "st") if isinstance(s, tuple) else a(s)) for s in L]

XPOS_MERGE = {0: 0, 1: 2, 2: 12, 3: 24, 4: 36, 5: 46, 6: 56, 7: 66, 8: 76}
XPOS_PLAIN = {0: 0, 1: 1, 2: 8, 3: 16, 4: 24, 5: 32, 6: 40, 7: 48, 8: 56}

def rows_first(a, stride, scol):
    a(f"s_mul_i32 s47, s{S_WAVE}, {8*stride}\ns_add_u32 s47, s47, s{scol}")
    a(f"s_mul_i32 s{S_WR}, s34, {64*stride}\ns_add_u32 s{S_WR}, s{S_WR}, s47")
def late_setup(a, stride):
    a(f"s_add_u32 s33, s47, {9*64*stride}\ns_add_u32 s35, s{S_XB}, {9*128}")
    for p in range(1, 9):
        a(f"s_add_u32 s{S_WR+p}, s{S_WR+p-1}, {64*stride}\ns_cmp_eq_u32 s{S_WR+p}, s33\ns_cselect_b32 s{S_WR+p}, s47, s{S_WR+p}")
        a(f"s_add_u32 s{S_XP+p}, s{S_XP+p-1}, 128\ns_cmp_eq_u32 s{S_XP+p}, s35\ns_cselect_b32 s{S_XP+p}, s{S_XB}, s{S_XP+p}")
def late_valu(a):
    a(f"""
    v_lshlrev_b32 v{V_L16}, 4, v0
    v_and_b32 v21, 15, v0
    v_lshrrev_b32 v22, 2, v21       ; r
    v_and_b32 v21, 3, v21           ; c
    v_lshrrev_b32 v23, 5, v0        ; hf
    v_lshl_add_u32 v24, v23, 3, v22 ; 8hf + r
    v_lshlrev_b32 v24, 7, v24
    v_lshl_add_u32 v24, v21, 3, v24
    v_and_b32 v21, 16, v0
    v_lshl_add_u32 v24, v21, 1, v24
    v_and_b32 v22, 2, v22
    v_lshl_add_u32 v{V_RB}, v22, 5, v24
    v_xor_b32 v{V_RB+1}, 64, v{V_RB}
    v_add_u32 v{V_RB+2}, 0x10000, v{V_RB}
    v_add_u32 v{V_RB+3}, 0x10000, v{V_RB+1}
    v_add_u32 v{V_RB+4}, 0x20000, v{V_RB}
    v_add_u32 v{V_RB+5}, 0x20000, v{V_RB+1}
    v_and_b32 v21, 31, v0
    v_lshrrev_b32 v22, 1, v21
    v_and_b32 v22, 7, v22
    v_xor_b32 v22, v22, v23
    v_lshlrev_b32 v22, 4, v22
    v_and_b32 v24, 7, v21
    v_lshl_add_u32 v22, v24, 7, v22
    v_lshrrev_b32 v24, 3, v21
    v_lshl_add_u32 v22, v24, 13, v22
    s_add_u32 s33, s{S_M0B}, 0x18000
    v_add_u32 v{V_XR}, s33, v22
    v_xor_b32 v{V_XR+1}, 32, v{V_XR}
    v_xor_b32 v{V_XR+2}, 64, v{V_XR}
    v_xor_b32 v{V_XR+3}, 96, v{V_XR}
    """)

CPF_LINES = 16
def gen(name):
    a = Asm()
    a("s_load_dwordx4 s[48:51], s[0:1], 0")
    a("s_load_dwordx4 s[52:55], s[0:1], 32")
    a("s_load_dwordx2 s[56:57], s[0:1], 80")
    a("s_load_dwordx2 s[58:59], s[0:1], 56")
    a(f"s_cmp_ge_u32 s2, 256\ns_cbranch_scc1 L1_END")
    stm.begin(a)
    a(f"""
    v_lshrrev_b32 v16, 6, v0
    v_and_b32 v0, 63, v0
    v_readfirstlane_b32 s{S_WAVE}, v16
    s_and_b32 s30, s2, 7            ; xcd
    s_lshr_b32 s31, s2, 3           ; j
    s_and_b32 s32, s30, 1
    s_lshl_b32 s32, s32, 2
    s_and_b32 s33, s31, 3           ; m local
    s_add_u32 s{S_MT}, s32, s33     ; mtile
    s_lshr_b32 s35, s30, 1          ; xn
    s_lshr_b32 s{S_SL}, s31, 2      ; s (0..7)
    s_lshl_b32 s34, s33, 1
    s_add_u32 s34, s34, s{S_SL}
    s_cmp_ge_u32 s34, 9
    s_cselect_b32 s33, 9, 0
    s_sub_u32 s34, s34, s33         ; rotation r
    v_lshrrev_b32 v17, 3, v0
    v_and_b32 v18, 7, v0            ; position
    v_lshrrev_b32 v19, 4, v0
    v_xor_b32 v19, v19, v18
    v_lshlrev_b32 v19, 4, v19
    v_mul_u32_u24 v20, 1152, v17
    v_add_u32 v{V_XD[0]}, v20, v19
    v_xor_b32 v19, 64, v19
    v_add_u32 v{V_XD[1]}, v20, v19
    v_lshlrev_b32 v20, 1, v17
    v_and_b32 v20, 4, v20
    v_xor_b32 v20, v20, v18
    v_lshlrev_b32 v20, 4, v20       ; seg*16
    s_lshl_b32 s{S_M0B}, s{S_WAVE}, 10
    s_lshl_b32 s{S_T}, s{S_MT}, 3
    s_add_u32 s{S_T}, s{S_T}, s{S_WAVE}
    s_mul_i32 s{S_XB}, s{S_T}, {32*1152}
    s_lshl_b32 s{S_XP}, s34, 7
    s_add_u32 s{S_XP}, s{S_XP}, s{S_XB}
    s_mov_b32 s{S_X+2}, {2048*1152}
    s_mov_b32 s{S_X+3}, 0x00020000
    s_mov_b32 s{S_W0+3}, 0x00020000
    """)
    if CPF:
        a(f"""
        s_cmp_lg_u32 s{S_WAVE}, 7
        s_cbranch_scc1 L1_NOPF
        s_getpc_b64 s[98:99]
        s_and_b32 s98, s98, 0xffffff00
        s_mul_i32 s33, s31, {CPF_LINES*128}
        v_lshlrev_b32 v30, 7, v0
        v_add_u32 v30, s33, v30
        v_mov_b32 v31, s99
        v_add_co_u32 v30, vcc, s98, v30
        v_addc_co_u32 v31, vcc, 0, v31, vcc
        v_cmp_gt_u32 vcc, {CPF_LINES}, v0
        s_and_saveexec_b64 s[96:97], vcc
        global_load_dword v32, v[30:31], off
        s_mov_b64 exec, -1
        """)
        a.label("L1_NOPF")
    a(f"s_cmp_ge_u32 s{S_SL}, 6\ns_cbranch_scc1 L1_QKV")

    ST = 9216
    a(f"""
    v_mul_u32_u24 v{V_DMA}, {ST}, v17
    v_add_u32 v{V_DMA}, v{V_DMA}, v20
    s_mul_i32 s35, s35, 6
    s_add_u32 s46, s35, s{S_SL}
    s_mul_i32 s35, s46, 384
    s_mov_b32 s{S_W0+2}, {576*ST}
    """)
    rows_first(a, ST, 35)
    if FINE: stm.stamp(a, 1)
    a("s_waitcnt lgkmcnt(0)")
    a(f"s_mov_b32 s{S_X}, s48\ns_mov_b32 s{S_X+1}, s49\ns_mov_b32 s{S_W0}, s52\ns_mov_b32 s{S_W0+1}, s53")
    def late_ffn():
        srd(a, S_W1, 54, 576 * ST)
        late_setup(a, ST)
    def late2_ffn():
        srd(a, S_WS, 56, WS_SIZE)
        late_valu(a)
        a(f"""
        v_mov_b32 v{V_C1}, {hex(f2u(GC1))}
        s_mov_b32 s{S_C2}, {hex(f2u(GC2))}
        s_mul_i32 s{S_HOFF}, s{S_T}, {288*1024}
        s_mul_i32 s33, s46, {12*1024}
        s_add_u32 s{S_HOFF}, s{S_HOFF}, s33
        """)
    ph = []
    for i in range(3):
        ph.append(dict(srd=S_W0, col=128 * i, swapped=True))
        ph.append(dict(srd=S_W1, col=128 * i, swapped=True))
    side = {}; pre = {}
    if STASH:
        for i in range(2, 6): ph[i]["acc"] = 1 - i % 2
        P = Prog(a, ph, True)
        A_, B_ = ACC
        def stash(t):
            L = []
            if t == 0: L.append(lambda: a(f"s_add_u32 s{S_TMP+1}, s{S_M0B}, 0x18000\nv_add_u32 v3, s{S_TMP+1}, v{V_L16}"))
            for k in range(4):
                L.append(lambda k=k: a.lds(f"ds_write_b128 v3, v[{B_+16*t+4*k}:{B_+16*t+4*k+3}] offset:{(4*t+k)*8192}", "sw"))
            return L
        pre[144] = stash(0); pre[145] = stash(1)
        gi = gelu_items(a, A_); fs = fin_store(a, A_)
        items = []
        for g in range(8):
            grp = gi[28 * g:28 * g + 28]
            items.append(lambda g=g: a.lds(f"ds_read_b128 v[{V_U}:{V_U+3}], v3 offset:{g*8192}", "u"))
            items += grp
            items.append(lambda: a.wait_lg("u"))
            items += [(lambda g=g, i=i: a(f"v_mul_f32 v{A_+4*g+i}, v{A_+4*g+i}, v{V_U+i}")) for i in range(4)]
            if g % 2: items += fs[5 * (g // 2):5 * (g // 2) + 5]
        items.append(fs[-1])
        spread(side, items, 144 + 2, 144 + 71)
        spread(side, gelu_items(a, B_), 216 + 3, 216 + 70)
        pre[288] = fin_mul(a, 0, B_, A_); pre[289] = fin_mul(a, 1, B_, A_)
        spread(side, fin_store(a, A_), 288 + 3, 288 + 40)
        spread(side, gelu_items(a, B_), 360 + 3, 360 + 70)
        P.emit(side, pre, {}, late_ffn, late2_ffn)
        for f in fin_mul(a, 0, B_, A_) + fin_mul(a, 1, B_, A_) + fin_store(a, A_): f()
    else:
        plan = {"j": {}, "grp": {}}
        if LEAD: a(f"s_cmp_ge_u32 s{S_WAVE}, 4\ns_cbranch_scc1 L1_FF\ns_setprio {LPRIO}")
        for role in (("L", "F") if LEAD else (None,)):
            side = {}; pre = {}
            a.vm = []; a.lg = []
            if role == "F":
                stm.end(a, S_WS, S_WAVE, 0)
                a("s_endpgm")
                a.label("L1_FF")
            P = Prog(a, ph, True)
            spread(side, gelu_items(a, ACC[0]), P.g_end + 3, 143)
            for i in (1, 2):
                b = 144 * i
                pre[b] = fin_mul(a, 0); pre[b + 1] = fin_mul(a, 1)
                spread(side, fin_store(a), b + 3, b + 40)
                spread(side, gelu_items(a, ACC[0]), b + 72 + 3, b + 142)
            P.emit(side, pre, {}, late_ffn, late2_ffn, role, plan, ST)
            for f in fin_mul(a, 0) + fin_mul(a, 1) + fin_store(a): f()
    stm.end(a, S_WS, S_WAVE, 0)
    a("s_endpgm")

    a.label("L1_QKV")
    ST = 3456
    a(f"""
    v_mul_u32_u24 v{V_DMA}, {ST}, v17
    v_add_u32 v{V_DMA}, v{V_DMA}, v20
    s_lshl_b32 s35, s35, 1
    s_add_u32 s35, s35, s{S_SL}
    s_sub_u32 s{S_SL}, s35, 6
    s_lshl_b32 s32, s{S_SL}, 2
    s_mul_i32 s33, s{S_SL}, 3
    s_add_u32 s33, s33, 3
    s_cmp_le_u32 s{S_SL}, 3
    s_cselect_b32 s32, s32, s33         ; start phase
    s_lshl_b32 s{S_COL}, s32, 6
    s_lshl_b32 s35, s32, 7
    """)
    a(f"s_mov_b32 s{S_W0+2}, {576*ST}")
    rows_first(a, ST, 35)
    a("s_waitcnt lgkmcnt(0)")
    a(f"s_mov_b32 s{S_X}, s48\ns_mov_b32 s{S_X+1}, s49\ns_mov_b32 s{S_W0}, s50\ns_mov_b32 s{S_W0+1}, s51")
    late_q = lambda: late_setup(a, 3456)
    a(f"s_cmp_ge_u32 s{S_SL}, 5\ns_cbranch_scc1 L1_V")
    def late2_qk():
        srd(a, S_WS, 56, WS_SIZE)
        late_valu(a)
        a(f"""
        s_movk_i32 s{S_TMP+2}, 3641
        s_mov_b32 s{S_TMP+3}, {QK_HS}
        s_mul_i32 s{S_HOFF}, s{S_T}, 1536
        s_add_u32 s{S_HOFF}, s{S_HOFF}, {WS_Q}
        v_lshlrev_b32 v10, 2, v23
        v_lshlrev_b32 v0, 4, v21
        """)
    a.vm = []; a.lg = []
    P = Prog(a, [dict(srd=S_W0, col=128 * i, swapped=True) for i in range(4)], False)
    side = {}
    for i in range(1, 4): spread(side, qk_epi(a, ACC[(i - 1) % 2]), 72 * i + 3, 72 * i + 70)
    def exit3():
        a(f"s_cmp_ge_u32 s{S_SL}, 3\ns_cbranch_scc1 L1_QK3")
    P.emit(side, {}, {215: exit3}, late_q, late2_qk)
    for f in qk_epi(a, ACC[1]): f()
    stm.end(a, S_WS, S_WAVE, 0)
    a("s_endpgm")
    a.label("L1_QK3")
    for f in qk_epi(a, ACC[0]): f()
    stm.end(a, S_WS, S_WAVE, 0)
    a("s_endpgm")
    a.label("L1_V")
    def late2_v():
        srd(a, S_WS, 56, WS_SIZE)
        late_valu(a)
        a(f"""
        s_movk_i32 s{S_TMP+2}, 3641
        s_mov_b32 s{S_TMP+3}, {64*1280}
        s_mul_i32 s{S_HOFF}, s{S_T}, 1280
        s_add_u32 s{S_HOFF}, s{S_HOFF}, {WS_V}
        v_mov_b32 v10, v21
        v_mul_u32_u24 v0, 320, v23
        """)
    a.vm = []; a.lg = []
    P = Prog(a, [dict(srd=S_W0, col=128 * i, swapped=False) for i in range(3)], False)
    side = {}
    for i in range(1, 3): spread(side, v_epi(a, ACC[(i - 1) % 2]), 72 * i + 3, 72 * i + 40)
    P.emit(side, {}, {}, late_q, late2_v)
    for f in v_epi(a, ACC[0]): f()
    a(f"s_cmp_lg_u32 s{S_SL}, 7\ns_cbranch_scc1 L1_END")
    srd(a, S_W1, 58, 1152)
    a(f"v_lshrrev_b32 v11, 9, v{V_L16}\nv_lshlrev_b32 v11, 4, v11")
    a.vm = []
    GB = [16 + 4 * i for i in range(8)] + [96 + 4 * i for i in range(4)]
    D = ACC[1]
    for rnd in range(3):
        for i in range(12):
            ks = rnd * 12 + i
            if i % 4 == 0: a(f"s_sub_u32 s{S_TMP}, s{S_XP + ks // 4}, s{S_XB}")
            a.vmem(f"buffer_load_dwordx4 v[{GB[i]}:{GB[i]+3}], v11, s[{S_W1}:{S_W1+3}], s{S_TMP} offen offset:{(ks%4)*32}", i)
        for i in range(12):
            ks = rnd * 12 + i
            a.wait_vm(i)
            c = "0" if ks == 0 else f"v[{D}:{D+15}]"
            a(f"v_mfma_f32_32x32x16_bf16 v[{D}:{D+15}], v[{GB[i]}:{GB[i]+3}], v[{VX+4*ks}:{VX+4*ks+3}], {c}")
    a(f"""
    v_mul_f32 v12, {hex(f2u(-math.log2(math.e)))}, v{D}
    v_exp_f32 v12, v12
    v_add_f32 v12, 1.0, v12
    v_rcp_f32 v12, v12
    v_lshlrev_b32 v13, 2, v10
    s_lshl_b32 s30, s{S_T}, 7
    s_add_u32 s30, s30, {WS_G}
    buffer_store_dword v12, v13, s[{S_WS}:{S_WS+3}], s30 offen
    """)
    a.label("L1_END")
    a("s_endpgm")
    n = a.fix()
    return a, n
if __name__ == "__main__":
    a, n = gen("l1_kernel"); print(n, len(a.ins))
    m = 0
    for x in a.ins:
        if x.kind == "mfma": m += 1
        if m > 160: break
        if x.kind == "vmem" or x.op in ("s_barrier",) or "vmcnt" in x.text or x.op == "ds_read_b128": print(m, x.text)
```
